```python
import torch

def _softmax(x, axis=-1):
    return torch.softmax(x, dim=axis)
def _gelu(x):
    return torch.nn.functional.gelu(x, approximate="tanh")
def _silu(x):
    return torch.nn.functional.silu(x)
def _sigmoid(x):
    return torch.sigmoid(x)
def _layernorm(x, axis=-1, eps=1e-5):
    m = x.mean(dim=axis, keepdim=True)
    v = x.var(dim=axis, keepdim=True, unbiased=False)
    return (x - m) / torch.sqrt(v + eps)
def _scatter_add(tgt, idx, src, axis=0):
    return tgt.clone().index_add_(axis, idx, src)
def _segment_sum(src, seg, n):
    out = torch.zeros((n,) + src.shape[1:], dtype=src.dtype)
    return out.index_add_(0, seg, src)
def _pad(x, pw):
    flat = tuple(v for pair in reversed(pw) for v in pair)
    return torch.nn.functional.pad(x, flat)

kernel_name = 'concat_heads__linear_kernel_hedgehog__linear_attn_block__prompt'

def setup_inputs():

    _w = (lambda a: (lambda t: t.to(torch.bfloat16) if t.is_floating_point() else t)(torch.as_tensor(a)))
    def _A_setup():
        B, S, D, H = 1, 2048, 640, 32
        Dh = D // H
        return {
            "x": _w((lambda *s: torch.randn(*s, dtype=torch.bfloat16) * 0.4)(B, S, D)),
            "wqkv": _w((lambda *s: torch.randn(*s, dtype=torch.bfloat16) * 0.4)(D, 3 * D)),
            "w_phi": _w((lambda *s: torch.randn(*s, dtype=torch.bfloat16) * 0.4)(H, Dh, Dh) * (Dh ** -0.5)),
            "wo": _w((lambda *s: torch.randn(*s, dtype=torch.bfloat16) * 0.05)(D, D)),
        }
    _A_in = _A_setup()

    def _B_setup():
        B, S, D = 1, 2048, 640
        return {
            "x": _w((lambda *s: torch.randn(*s, dtype=torch.bfloat16) * 0.05)(B, S, D)),
            "wqkv": _w((lambda *s: torch.randn(*s, dtype=torch.bfloat16) * 0.8)(D, 3 * D)),
            "wo": _w((lambda *s: torch.randn(*s, dtype=torch.bfloat16) * 0.4)(D, D)),
        }
    _B_in = _B_setup()

    return {
        "A_x": _A_in["x"],
        "A_wqkv": _A_in["wqkv"],
        "A_w_phi": _A_in["w_phi"],
        "A_wo": _A_in["wo"],
        "B_x": _B_in["x"],
        "B_wqkv": _B_in["wqkv"],
        "B_wo": _B_in["wo"],
    }

def reference(A_x, A_wqkv, A_w_phi, A_wo, B_x, B_wqkv, B_wo):
    def _A_ref(x, wqkv, w_phi, wo):
        B, S, D = x.shape
        H = 32; Dh = D // H
        qkv = (lambda x, *d: x.permute(*d))((x @ wqkv).reshape(B, S, 3, H, Dh), 2, 0, 3, 1, 4)
        q, k, v = qkv[0], qkv[1], qkv[2]
        pq = torch.einsum("bhsd,hdf->bhsf", q, w_phi)
        pk = torch.einsum("bhsd,hdf->bhsf", k, w_phi)
        phi_q = torch.concatenate([_softmax(pq, axis=-1), _softmax(-pq, axis=-1)], axis=-1)
        phi_k = torch.concatenate([_softmax(pk, axis=-1), _softmax(-pk, axis=-1)], axis=-1)
        kv = torch.einsum("bhsf,bhsd->bhfd", phi_k, v)
        z  = torch.einsum("bhsf->bhf", phi_k)
        num = torch.einsum("bhqf,bhfd->bhqd", phi_q, kv)
        den = torch.einsum("bhqf,bhf->bhq", phi_q, z)[..., None] + 1e-6
        o = num / den
        return (lambda x, *d: x.permute(*d))(o, 0, 2, 1, 3).reshape(B, S, D) @ wo

    def _B_ref(x, wqkv, wo):
        B, S, D = x.shape
        H = 32; Dh = D // H
        qkv = (lambda x, *d: x.permute(*d))((x @ wqkv).reshape(B, S, 3, H, Dh), 2, 0, 3, 1, 4)
        q, k, v = qkv[0], qkv[1], qkv[2]
        phi = lambda t: torch.where(t > 0, t + 1, torch.exp(t)) + 1e-6
        pq, pk = phi(q), phi(k)
        kv = torch.einsum("bhsd,bhse->bhde", pk, v)
        z = torch.einsum("bhsd->bhd", pk)
        num = torch.einsum("bhqd,bhde->bhqe", pq, kv)
        den = torch.einsum("bhqd,bhd->bhq", pq, z)[..., None] + 1e-6
        o = num / den
        return (lambda x, *d: x.permute(*d))(o, 0, 2, 1, 3).reshape(B, S, D) @ wo

    a = _A_ref(A_x, A_wqkv, A_w_phi, A_wo)
    b = _B_ref(B_x, B_wqkv, B_wo)
    return torch.concatenate([a, b], axis=-1)
```

```python
import re

REG_RE = re.compile(r"(?<![\w.])([vas])(\d+)(?![\w\[])|(?<![\w.])([vas])\[(\d+):(\d+)\]|(?<![\w.])(vcc|exec|m0)(?:_lo|_hi)?(?![\w])")
TRANS = ("v_exp_f32", "v_log_f32", "v_rcp_f32", "v_rsq_f32", "v_sqrt_f32", "v_sin_f32", "v_cos_f32", "v_rcp_iflag_f32")


def regs_of(op):
    out = []
    for m in REG_RE.finditer(op):
        if m.group(1):
            out.append(m.group(1) + m.group(2))
        elif m.group(3):
            out += [m.group(3) + str(i) for i in range(int(m.group(4)), int(m.group(5)) + 1)]
        else:
            out.append(m.group(6))
    return out


def split_ops(rest):
    ops, depth, cur = [], 0, ""
    for ch in rest:
        if ch in "[(":
            depth += 1
        elif ch in "])":
            depth -= 1
        if ch == "," and depth == 0:
            ops.append(cur.strip())
            cur = ""
        else:
            cur += ch
    if cur.strip():
        ops.append(cur.strip())
    return ops


class Ins:
    def __init__(self, text):
        self.text = text
        t = text.split(";")[0].strip()
        parts = t.split(None, 1)
        mn = parts[0]
        self.mn = mn
        rest = parts[1] if len(parts) > 1 else ""
        ops = split_ops(rest)
        self.ops = ops
        base = re.sub(r"_e(32|64)$|_dpp$|_sdwa$", "", mn)
        self.base = base
        R = [regs_of(o) for o in ops]
        allr = [r for x in R for r in x]
        self.w, self.r = [], []
        self.kind = "other"
        self.mfma_c = []
        self.mfma_ab = []
        self.passes = 0
        self.dpp = ("row_" in t or "quad_perm" in t or "wave_" in t) and mn.startswith("v_")
        if mn.startswith("v_mfma"):
            self.kind = "mfma"
            self.w = R[0]
            self.mfma_ab = R[1] + R[2]
            self.mfma_c = R[3]
            self.r = self.mfma_ab + self.mfma_c
            self.passes = 8 if "32x32" in mn else 4
        elif mn.startswith("v_"):
            self.kind = "trans" if base in TRANS else "valu"
            if base in ("v_permlane32_swap_b32", "v_permlane16_swap_b32", "v_swap_b32"):
                self.w = R[0] + R[1]
                self.r = R[0] + R[1]
            elif base == "v_nop":
                pass
            else:
                self.w = list(R[0])
                self.r = [r for x in R[1:] for r in x]
                if base in ("v_fmac_f32", "v_writelane_b32") or self.dpp:
                    self.r += R[0]
                if base in ("v_add_co_u32", "v_sub_co_u32", "v_addc_co_u32", "v_mad_u64_u32"):
                    self.w += R[1]
                    self.r = [r for x in R[2:] for r in x]
        elif mn.startswith("ds_"):
            self.kind = "ds"
            if mn.startswith("ds_read") or "permute" in mn or "swizzle" in mn:
                self.w = R[0]
                self.r = [r for x in R[1:] for r in x]
            else:
                self.r = allr
        elif mn.startswith("buffer_") or mn.startswith("global_"):
            self.kind = "vmem"
            self.lds = bool(re.search(r"\blds\b", t))
            if "_load" in mn and not self.lds:
                self.w = R[0]
                self.r = [r for x in R[1:] for r in x]
            else:
                self.r = allr
                if self.lds:
                    self.r = allr + ["m0"]
                if "atomic" in mn and re.search(r"\bsc0\b", t):
                    self.w = R[0]
            self.wide_store = ("store" in mn) and (mn.endswith("x4") or mn.endswith("x3"))
            self.store_data = R[0] if "store" in mn else []
        elif mn.startswith("s_"):
            self.kind = "salu"
            if mn.startswith(("s_load", "s_memtime", "s_memrealtime")):
                self.kind = "smem"
                self.w = R[0]
                self.r = [r for x in R[1:] for r in x]
            elif mn.startswith(("s_cmp", "s_waitcnt", "s_barrier", "s_branch", "s_cbranch", "s_nop", "s_sleep",
                                "s_setprio", "s_endpgm", "s_bitcmp")):
                self.r = allr
            else:
                self.w = R[0]
                self.r = [r for x in R[1:] for r in x]
                if "saveexec" in mn:
                    self.w = self.w + ["exec"]


class Asm:
    def __init__(self):
        self.lines = []
        self.n = 0
        self.prod = []
        self.lg = []
        self.vm = []
        self.cond = None
        self.nops = 0
        self.stack = []

    def raw(self, text):
        self.lines.append(text)

    def comment(self, text):
        self.lines.append("    ; " + text)

    def label(self, name):
        self.lines.append(name + ":")

    def _put(self, text, slots=1):
        self.lines.append("    " + text)
        self.n += slots

    def _need(self, I):
        need = 0
        rs, ws = set(I.r), set(I.w)
        isvalu = I.kind in ("valu", "trans")
        for (t, kind, regs, ps) in self.prod:
            d = 0
            if kind in ("valu", "trans"):
                hit = regs & rs
                if hit:
                    vg = any(x[0] in "va" and x != "vcc" for x in hit)
                    sg = any(x[0] == "s" or x == "vcc" for x in hit)
                    if I.kind == "mfma":
                        d = max(d, 2)
                    if isvalu:
                        if vg and I.dpp:
                            d = max(d, 2)
                        if vg and I.base.startswith("v_permlane"):
                            d = max(d, 2)
                        if vg and I.base in ("v_readfirstlane_b32", "v_readlane_b32"):
                            d = max(d, 1)
                        if vg and kind == "trans" and I.kind != "trans":
                            d = max(d, 1)
                        if sg:
                            d = max(d, 4 if I.base in ("v_readlane_b32", "v_writelane_b32") else 2)
                    if I.kind == "vmem" and sg:
                        d = max(d, 5)
                    if I.kind in ("salu", "smem") and sg:
                        d = max(d, 1)
                    if kind == "trans" and vg and I.kind in ("ds", "vmem"):
                        d = max(d, 1)
            elif kind == "m0":
                if I.kind == "vmem" and getattr(I, "lds", False):
                    d = 1
            elif kind == "store":
                if regs & ws:
                    d = 2 if isvalu else 1
            elif kind == "mfmaD":
                big = 12 if ps == 8 else 8
                if I.kind == "mfma":
                    if regs & set(I.mfma_ab):
                        d = max(d, big)
                    c = set(I.mfma_c)
                    if regs & c:
                        if not (c == regs and I.passes == ps):
                            d = max(d, 10 if ps == 8 else 6)
                    elif regs & ws:
                        d = max(d, big)
                elif regs & (rs | ws):
                    d = max(d, big)
            elif kind == "mfmaC":
                if isvalu and regs & ws:
                    d = 7 if ps == 8 else 3
            if d:
                have = self.n - t - 1
                need = max(need, d - have)
        return need

    def _record(self, I):
        t = self.n - 1
        if I.kind in ("valu", "trans") and I.w:
            self.prod.append((t, I.kind, set(I.w), 0))
        if I.kind == "salu" and "m0" in I.w:
            self.prod.append((t, "m0", {"m0"}, 0))
        if I.kind == "vmem" and I.wide_store:
            self.prod.append((t, "store", set(I.store_data), 0))
        if I.kind == "mfma":
            self.prod.append((t, "mfmaD", set(I.w), I.passes))
            if I.mfma_c:
                self.prod.append((t, "mfmaC", set(I.mfma_c), I.passes))
        self.prod = [p for p in self.prod if self.n - p[0] < 24]

    def nop(self, k):
        while k > 0:
            c = min(k, 16)
            self._put("s_nop %d" % (c - 1), c)
            self.nops += c
            k -= c

    def _vm_after(self, idx):
        return sum(1 for o in self.vm[idx + 1:] if o["cond"] is None or o["cond"] == self.cond)

    def _emit_wait(self, vmn, lgn):
        t = "s_waitcnt"
        if vmn is not None:
            t += " vmcnt(%d)" % min(vmn, 63)
        if lgn is not None:
            t += " lgkmcnt(%d)" % min(lgn, 15)
        self._put(t)

    def _retire_vm(self, idx):
        for o in self.vm[:idx + 1]:
            o["done"].add(self.cond)
        self.vm = [o for o in self.vm if not (None in o["done"] or (o["cond"] is not None and o["cond"] in o["done"]))]

    def _auto_wait(self, I):
        touched = set(I.r) | set(I.w)
        lgi = None
        for i, d in enumerate(self.lg):
            if d & touched:
                if I.kind == "ds" and not (d & set(I.r)):
                    continue
                lgi = i
        vmi = None
        for i, o in enumerate(self.vm):
            if o["dst"] & touched and self.cond not in o["done"]:
                vmi = i
        if lgi is None and vmi is None:
            return
        lgn = None if lgi is None else len(self.lg) - 1 - lgi
        vmn = None if vmi is None else self._vm_after(vmi)
        self._emit_wait(vmn, lgn)
        if lgi is not None:
            self.lg = self.lg[lgi + 1:]
        if vmi is not None:
            self._retire_vm(vmi)

    def wait_tag(self, tag, lg0=False):
        idx = None
        for i, o in enumerate(self.vm):
            if o["tag"] == tag and self.cond not in o["done"]:
                idx = i
        lgn = 0 if (lg0 and self.lg) else None
        if idx is None and lgn is None:
            return
        self._emit_wait(None if idx is None else self._vm_after(idx), lgn)
        if idx is not None:
            self._retire_vm(idx)
        if lgn is not None:
            self.lg = []

    def wait_lg(self):
        if self.lg:
            self._emit_wait(None, 0)
            self.lg = []

    def wait_vm0(self):
        self._emit_wait(0, None)
        if self.vm:
            self._retire_vm(len(self.vm) - 1)

    def wait_all(self):
        self._emit_wait(0, 0)
        self.lg = []
        if self.vm:
            self._retire_vm(len(self.vm) - 1)

    def __call__(self, text, tag=None):
        for ln in text.strip().split("\n"):
            ln = ln.strip()
            if not ln or ln.startswith(";"):
                continue
            if ln.endswith(":"):
                self.label(ln[:-1])
                continue
            self.one(ln, tag)

    def one(self, text, tag=None):
        I = Ins(text)
        self._auto_wait(I)
        k = self._need(I)
        if k > 0:
            self.nop(k)
        if I.mn == "s_nop":
            self._put(text, int(I.ops[0]) + 1)
        else:
            self._put(text)
        self._record(I)
        if I.kind == "ds":
            self.lg.append(set(I.w))
        elif I.kind == "vmem":
            self.vm.append(dict(dst=set(I.w), tag=tag, cond=self.cond, done=set()))
        elif I.mn == "s_waitcnt":
            m = re.search(r"lgkmcnt\((\d+)\)", text)
            if m and int(m.group(1)) == 0:
                self.lg = []
            m = re.search(r"vmcnt\((\d+)\)", text)
            if m and int(m.group(1)) == 0 and self.vm:
                self._retire_vm(len(self.vm) - 1)

    def begin_cond(self, name):
        assert self.cond is None
        self.cond = name
        self.stack.append((self.n, list(self.prod), list(self.lg)))

    def end_cond(self):
        n0, prod0, lg0 = self.stack.pop()
        inside_new = [d for d in self.lg if not any(d is x for x in lg0)]
        if inside_new:
            self._emit_wait(None, 0)
        self.lg = lg0
        shift = self.n - n0
        self.prod = [(t + shift, k, r, p) for (t, k, r, p) in prod0] + [p for p in self.prod if p[0] >= n0]
        self.cond = None

    def snapshot(self):
        import copy
        return (self.n, list(self.prod), [set(x) for x in self.lg], copy.deepcopy(self.vm), self.cond)

    def restore(self, s):
        import copy
        self.n, self.prod, self.lg, self.vm, self.cond = s[0], list(s[1]), [set(x) for x in s[2]], copy.deepcopy(s[3]), s[4]

    def text(self):
        return "\n".join(self.lines) + "\n"


def merge(main, side, start=0, end=None):
    if end is None:
        end = len(main)
    out = list(main[:start])
    span = end - start
    k = 0
    for i in range(span):
        out.append(main[start + i])
        while k < len(side) and (k + 1) * span <= (i + 1) * len(side) + span - 1 and (k * span) // max(len(side), 1) <= i:
            out.append(side[k])
            k += 1
    out += side[k:]
    out += main[end:]
    return out


def rr(*streams):
    out = []
    n = max(len(s) for s in streams)
    for i in range(n):
        for s in streams:
            if i < len(s):
                out.append(s[i])
    return out
```

```python
import sys
sys.path.insert(0, "gen")
from asmlib import Asm, merge, rr

NAME = "concat_heads__linear_kernel_hedgehog__linear_attn_block__prompt"
KNAME = NAME + "_kernel"

SLOT = 36864
KBUF, VBUF = 40960, 61440
WQ_R = [110592, 131072, 81920, 0, 20480]
WO_R = [VBUF, WQ_R[0], WQ_R[1], WQ_R[2], WQ_R[3]]
PHIST = 151552
ONES = 155648
LDS_BYTES = 163840
PSTR = 1792
PART = 0
RED = 0x200000
OBUF = 0x300000
STATS = 0x900000
OOB = 0x40000000
LOG2E = 0x3fb8aa3b
EPS = 0x358637bd
NEPSC = 0xb5c1a2f1


class Regs:
    def __init__(self, kind, lo, hi):
        self.kind, self.next, self.hi = kind, lo, hi
        self.names = {}

    def alloc(self, name, n=1, align=1):
        self.next = (self.next + align - 1) // align * align
        r = self.next
        self.next += n
        assert self.next <= self.hi, "out of %s regs at %s" % (self.kind, name)
        self.names[name] = r
        return r


def v(i, n=1):
    return "v%d" % i if n == 1 else "v[%d:%d]" % (i, i + n - 1)


def a(i, n=1):
    return "a%d" % i if n == 1 else "a[%d:%d]" % (i, i + n - 1)


def s(i, n=1):
    return "s%d" % i if n == 1 else "s[%d:%d]" % (i, i + n - 1)


class Gen:
    def __init__(self, stamps=False, opt=None):
        self.A = Asm()
        self.stamps = stamps
        self.opt = dict(RD=4, r1_at=6, r2_at=13, orders=None, o_delay=0)
        if opt:
            self.opt.update(opt)
        self.nst = 0
        self.slow = []
        self.alloc()

    def alloc(self):
        S = Regs("s", 24, 102)
        self.sX = S.alloc("X", 4, 4)
        self.sW = S.alloc("W", 4, 4)
        self.sWO = S.alloc("WO", 4, 4)
        self.sWS = S.alloc("WS", 4, 4)
        self.sOUT = S.alloc("OUT", 4, 4)
        self.sAUX = S.alloc("AUX", 4, 4)
        self.sDBG = S.alloc("DBG", 4, 4)
        for nm in ("br", "rb", "hg", "w", "slot", "xbase", "wbase", "m0b", "t0", "t1", "t2", "part", "red", "slice",
                   "ost", "old", "wob", "rot", "outb", "cnt"):
            setattr(self, "s_" + nm, S.alloc(nm))
        self.s_ord = S.alloc("ord", 2, 2)
        self.s_ordq = S.alloc("ordq", 2, 2)
        self.s_c = S.alloc("c", 2, 2)
        self.s_st = S.alloc("stamps", 0, 2)
        self.S = S
        V = Regs("v", 1, 256)
        self.vl = V.alloc("lane")
        self.vXa = V.alloc("Xa", 4)
        self.vWa = V.alloc("Wa", 5)
        self.vOa = V.alloc("Oa", 5)
        self.vOl = V.alloc("Ol", 5)
        self.vWr = V.alloc("Wr", 3)
        self.vXr = V.alloc("Xr", 4)
        self.vEx = V.alloc("Ex", 5)
        self.vHr0 = V.alloc("Hr0")
        self.vHr4 = V.alloc("Hr4")
        self.vPw = V.alloc("Pw")
        self.vTm = V.alloc("Tm")
        self.vT2 = V.alloc("T2")
        self.vVd = V.alloc("Vd", 8)
        self.vL16 = V.alloc("L16")
        self.vP0 = V.alloc("P0")
        self.vP1 = V.alloc("P1")
        self.vP2 = V.alloc("P2")
        self.vRl = V.alloc("Rl")
        self.vRs = V.alloc("Rs")
        self.vK = V.alloc("K", 3)
        self.vOm = V.alloc("Om")
        self.vOx = V.alloc("Ox", 2)
        self.vSo = V.alloc("So")
        self.vSo4 = V.alloc("So4")
        self.vCnt = V.alloc("Cnt")
        self.vSel = V.alloc("Sel", 4, 4)
        self.vEps = V.alloc("Eps", 4, 4)
        self.vPhi = V.alloc("Phi", 6, 4)
        self.vKV = V.alloc("KV", 10, 2)
        self.vF = V.alloc("F", 32, 4)
        self.vAcc = V.alloc("Acc", 80, 4)
        self.vT = V.alloc("T", 0, 4)
        self.V = V

    def stamp(self):
        if not self.stamps:
            return
        pool = list(range(self.s_st, 100, 2)) + list(range(4, 24, 2))
        r = pool[self.nst]
        self.nst += 1
        self.A("s_memtime %s" % s(r, 2))

    def emit(self, items):
        for it in items:
            if callable(it):
                it()
            elif isinstance(it, tuple):
                self.A(it[0], it[1])
            else:
                self.A(it)

    def ds(self, bases, off):
        return v(bases + off // 65536), off % 65536

    def prologue(self):
        A = self.A
        l = self.vl
        T = self.vT
        A("s_cmp_ge_u32 s2, 256")
        A("s_cbranch_scc1 L_end")
        A("s_load_dwordx16 s[4:19], s[0:1], 0")
        A("s_load_dwordx4 s[20:23], s[0:1], 64")
        if self.stamps:
            A("s_memrealtime s[100:101]")
        self.stamp()
        A("s_getpc_b64 %s" % s(self.sAUX, 2))
        A("s_mov_b32 %s, CODE_BYTES" % s(self.sAUX + 2))
        A("s_mov_b32 %s, 0x20000" % s(self.sAUX + 3))
        A("s_lshr_b32 %s, s2, 3" % s(self.s_slot))
        A("s_lshl_b32 %s, %s, 11" % (s(self.s_t0), s(self.s_slot)))
        A("v_lshlrev_b32 %s, 7, v0" % v(T))
        A("v_cmp_gt_u32 vcc, 16, v0")
        A("v_mov_b32 %s, 0x%x" % (v(T + 1), OOB))
        A("v_lshrrev_b32 %s, 6, v0" % v(T + 2))
        A("v_cndmask_b32 %s, %s, %s, vcc" % (v(T), v(T + 1), v(T)))
        A("v_and_b32 %s, 63, v0" % v(l))
        A("v_readfirstlane_b32 %s, %s" % (s(self.s_w), v(T + 2)))
        A("buffer_load_dword %s, %s, %s, %s offen" % (v(self.vCnt), v(T), s(self.sAUX, 4), s(self.s_t0)), "pf")
        A("s_bfe_u32 %s, s2, 0x10002" % s(self.s_br))
        A("s_bfe_u32 %s, s2, 0x10001" % s(self.s_t0))
        A("s_and_b32 %s, %s, 7" % (s(self.s_t1), s(self.s_slot)))
        A("s_lshl_b32 %s, %s, 3" % (s(self.s_t0), s(self.s_t0)))
        A("s_add_u32 %s, %s, %s" % (s(self.s_rb), s(self.s_t0), s(self.s_t1)))
        A("s_lshr_b32 %s, %s, 3" % (s(self.s_t2), s(self.s_slot)))
        A("s_and_b32 %s, s2, 1" % s(self.s_t0))
        A("s_lshl_b32 %s, %s, 2" % (s(self.s_t0), s(self.s_t0)))
        A("s_add_u32 %s, %s, %s" % (s(self.s_hg), s(self.s_t0), s(self.s_t2)))
        orders = self.opt["orders"] or [[(st + t) % 10 for t in range(10)] for st in (0, 2, 5, 7)]
        words = []
        for o in orders:
            assert sorted(o) == list(range(10))
            x = sum(c << (4 * t) for t, c in enumerate(o))
            words.append((x & 0xffffffff, x >> 32))
        A("s_add_u32 %s, %s, %s" % (s(self.s_t1), s(self.s_t1), s(self.s_t2)))
        A("s_and_b32 %s, %s, %d" % (s(self.s_t1), s(self.s_t1), len(orders) - 1))
        A("s_mov_b32 %s, 0x%x" % (s(self.s_ord), words[0][0]))
        A("s_mov_b32 %s, 0x%x" % (s(self.s_ord + 1), words[0][1]))
        for i in range(1, len(orders)):
            A("s_cmp_eq_u32 %s, %d" % (s(self.s_t1), i))
            A("s_cselect_b32 %s, 0x%x, %s" % (s(self.s_ord), words[i][0], s(self.s_ord)))
            A("s_cselect_b32 %s, 0x%x, %s" % (s(self.s_ord + 1), words[i][1], s(self.s_ord + 1)))
        A("v_lshrrev_b32 %s, 3, %s" % (v(T), v(l)))
        A("v_lshrrev_b32 %s, 4, %s" % (v(T + 1), v(l)))
        A("v_and_b32 %s, 7, %s" % (v(T + 2), v(l)))
        A("v_mul_u32_u24 %s, 1280, %s" % (v(T), v(T)))
        A("v_xor_b32 %s, %s, %s" % (v(T + 2), v(T + 2), v(T + 1)))
        A("v_lshl_add_u32 %s, %s, 4, %s" % (v(self.vXa), v(T + 2), v(T)))
        A("v_xor_b32 %s, 64, %s" % (v(T), v(self.vXa)))
        A("v_add_u32 %s, 9216, %s" % (v(self.vXa + 1), v(T)))
        A("v_add_u32 %s, 18432, %s" % (v(self.vXa + 2), v(self.vXa)))
        A("v_add_u32 %s, 27648, %s" % (v(self.vXa + 3), v(T)))
        for j in range(5):
            A("v_add_u32 %s, %d, %s" % (v(T), 64 * j, v(l)))
            A("v_mul_u32_u24 %s, 0xccd, %s" % (v(T + 1), v(T)))
            A("v_lshrrev_b32 %s, 15, %s" % (v(self.vOa + j), v(T + 1)))
            A("v_mul_u32_u24 %s, 10, %s" % (v(T + 1), v(self.vOa + j)))
            A("v_sub_u32 %s, %s, %s" % (v(T), v(T), v(T + 1)))
            A("v_lshlrev_b32 %s, 4, %s" % (v(T), v(T)))
            A("v_subrev_u32 %s, %d, %s" % (v(self.vOl + j), 1024 * (j % 4), v(T)))
            A("v_and_b32 %s, 12, %s" % (v(T), v(self.vOa + j)))
            A("v_lshrrev_b32 %s, 4, %s" % (v(T + 1), v(self.vOa + j)))
            A("v_and_b32 %s, 3, %s" % (v(T + 2), v(self.vOa + j)))
            A("v_lshl_add_u32 %s, %s, 1, %s" % (v(T), v(T), v(T + 2)))
            A("v_lshl_add_u32 %s, %s, 2, %s" % (v(T), v(T + 1), v(T)))
            A("v_mul_u32_u24 %s, 3840, %s" % (v(T), v(T)))
            A("v_add_u32 %s, %s, %s" % (v(self.vWa + j), v(T), v(self.vOl + j)))
        A("s_lshl_b32 %s, %s, 2" % (s(self.s_t0), s(self.s_rb)))
        A("s_add_u32 %s, %s, %s" % (s(self.s_t0), s(self.s_t0), s(self.s_w)))
        A("s_mul_i32 %s, %s, 40960" % (s(self.s_xbase), s(self.s_t0)))
        A("s_and_b32 %s, %s, 1" % (s(self.s_t0), s(self.s_w)))
        A("s_mul_i32 %s, %s, 122880" % (s(self.s_t0), s(self.s_t0)))
        A("s_mul_i32 %s, %s, 160" % (s(self.s_t1), s(self.s_hg)))
        A("s_add_u32 %s, %s, %s" % (s(self.s_cnt), s(self.s_t0), s(self.s_t1)))
        A("s_lshr_b32 %s, %s, 1" % (s(self.s_t0), s(self.s_w)))
        A("s_lshl_b32 %s, %s, 2" % (s(self.s_t1), s(self.s_t0)))
        A("s_lshr_b64 %s, %s, %s" % (s(self.s_ordq, 2), s(self.s_ord, 2), s(self.s_t1)))
        A("s_add_u32 %s, %s, 1" % (s(self.s_t0), s(self.s_t0)))
        A("s_mul_i32 %s, %s, 1280" % (s(self.s_t0), s(self.s_t0)))
        A("s_add_u32 %s, %s, %s" % (s(self.s_wbase), s(self.s_cnt), s(self.s_t0)))
        A("s_mul_i32 %s, %s, 9216" % (s(self.s_m0b), s(self.s_w)))
        A("s_mov_b32 %s, 2621440" % s(self.sX + 2))
        A("s_mov_b32 %s, 0x20000" % s(self.sX + 3))
        A("s_mov_b32 %s, 2457600" % s(self.sW + 2))
        A("s_mov_b32 %s, 0x20000" % s(self.sW + 3))
        A("s_cmp_eq_u32 %s, 0" % s(self.s_br))
        A("s_waitcnt lgkmcnt(0)")
        A("s_cselect_b32 %s, s4, s12" % s(self.sX))
        A("s_cselect_b32 %s, s5, s13" % s(self.sX + 1))
        A("s_cselect_b32 %s, s6, s14" % s(self.sW))
        A("s_cselect_b32 %s, s7, s15" % s(self.sW + 1))
        A("s_cselect_b32 %s, s10, s16" % s(self.sWO))
        A("s_cselect_b32 %s, s11, s17" % s(self.sWO + 1))
        self.emit(self.dma_chunk(0))
        self.emit(self.dma_chunk(1))
        self.stamp()

    def dma_chunk(self, t):
        base = (t % 3) * SLOT
        tag = "c%d" % t
        it = []
        w, sh = (self.s_ord, 4 * t) if t < 8 else (self.s_ord + 1, 4 * (t - 8))
        it.append("s_bfe_u32 %s, %s, 0x%x\n" % (s(self.s_t0), s(w), 0x40000 | sh) +
                  "s_lshl_b32 %s, %s, 7\n" % (s(self.s_t1), s(self.s_t0)) +
                  "s_add_u32 %s, %s, %s\n" % (s(self.s_t1), s(self.s_t1), s(self.s_xbase)) +
                  "s_add_u32 m0, %s, %d\n" % (s(self.s_m0b), base + 4096) +
                  "s_mul_i32 %s, %s, 245760\n" % (s(self.s_t0), s(self.s_t0)) +
                  "s_add_u32 %s, %s, %s\n" % (s(self.s_t0), s(self.s_t0), s(self.s_wbase)))
        for j in range(4):
            it.append(("buffer_load_dwordx4 %s, %s, %s offen offset:%d lds" % (v(self.vWa + j), s(self.sW, 4), s(self.s_t0), 1024 * j), tag))
        it.append("s_add_u32 m0, %s, %d" % (s(self.s_m0b), base + 8192))
        it.append(("buffer_load_dwordx4 %s, %s, %s offen lds" % (v(self.vWa + 4), s(self.sW, 4), s(self.s_t0)), tag))
        it.append("s_add_u32 m0, %s, %d" % (s(self.s_m0b), base))
        for j in range(4):
            it.append(("buffer_load_dwordx4 %s, %s, %s offen offset:%d lds" % (v(self.vXa + j), s(self.sX, 4), s(self.s_t1), 1024 * j), tag))
        return it

    def dma_block(self, pre, va, srd, ldsbase, tag):
        it = [pre + "s_add_u32 m0, %s, %d\n" % (s(self.s_m0b), ldsbase)]
        for j in range(4):
            it.append(("buffer_load_dwordx4 %s, %s, %s offen offset:%d lds" % (v(va + j), s(srd, 4), s(self.s_t0), 1024 * j), tag))
        it.append("s_add_u32 m0, %s, %d" % (s(self.s_m0b), ldsbase + 4096))
        it.append(("buffer_load_dwordx4 %s, %s, %s offen lds" % (v(va + 4), s(srd, 4), s(self.s_t0)), tag))
        return it

    def dma_wq(self, r):
        w, sh = (self.s_ordq, 8 * r) if r < 4 else (self.s_ordq + 1, 0)
        pre = ("s_bfe_u32 %s, %s, 0x%x\n" % (s(self.s_t0), s(w), 0x40000 | sh) +
               "s_mul_i32 %s, %s, 245760\n" % (s(self.s_t0), s(self.s_t0)) +
               "s_add_u32 %s, %s, %s\n" % (s(self.s_t0), s(self.s_t0), s(self.s_wbase)))
        return self.dma_block(pre, self.vWa, self.sW, WQ_R[r], "wq")

    def dma_wo(self, r):
        if r < 4:
            pre = ("s_add_u32 %s, %s, %d\n" % (s(self.s_t0), s(self.s_rot), 4 * r) +
                   "s_add_u32 %s, %s, %s\n" % (s(self.s_t0), s(self.s_t0), s(self.s_w)) +
                   "s_and_b32 %s, %s, 15\n" % (s(self.s_t0), s(self.s_t0)) +
                   "s_mul_i32 %s, %s, 51200\n" % (s(self.s_t0), s(self.s_t0)))
            va = self.vOa
        else:
            pre = ("s_lshr_b32 %s, %s, 2\n" % (s(self.s_t0), s(self.s_rot)) +
                   "s_add_u32 %s, %s, %s\n" % (s(self.s_t0), s(self.s_t0), s(self.s_w)) +
                   "s_and_b32 %s, %s, 3\n" % (s(self.s_t0), s(self.s_t0)) +
                   "s_mul_i32 %s, %s, 204800\n" % (s(self.s_t0), s(self.s_t0)))
            va = self.vOl
        pre += "s_add_u32 %s, %s, %s\n" % (s(self.s_t0), s(self.s_t0), s(self.s_wob))
        return self.dma_block(pre, va, self.sWO, WO_R[r], "wo")

    def setup(self):
        A = self.A
        l = self.vl
        T = self.vT
        g, i16, hf, s32, oob, r_, c_ = T + 8, T + 9, T + 10, T + 11, T + 12, T + 13, T + 14
        A("s_mov_b32 %s, 819200" % s(self.sWO + 2))
        A("s_mov_b32 %s, 0x20000" % s(self.sWO + 3))
        A("s_mov_b32 %s, s22" % s(self.sWS))
        A("s_mov_b32 %s, s23" % s(self.sWS + 1))
        A("s_mov_b32 %s, 0x10000000" % s(self.sWS + 2))
        A("s_mov_b32 %s, 0x20000" % s(self.sWS + 3))
        A("s_mov_b32 %s, s18" % s(self.sOUT))
        A("s_mov_b32 %s, s19" % s(self.sOUT + 1))
        A("s_mov_b32 %s, 5242880" % s(self.sOUT + 2))
        A("s_mov_b32 %s, 0x20000" % s(self.sOUT + 3))
        A("s_mov_b32 %s, s20" % s(self.sDBG))
        A("s_mov_b32 %s, s21" % s(self.sDBG + 1))
        A("s_mov_b32 %s, 256" % s(self.sDBG + 2))
        A("s_mov_b32 %s, 0x20000" % s(self.sDBG + 3))
        A("s_mov_b32 %s, s8" % s(self.sAUX))
        A("s_mov_b32 %s, s9" % s(self.sAUX + 1))
        A("s_mov_b32 %s, 25600" % s(self.sAUX + 2))
        A("s_mov_b32 %s, 0x%x" % (s(self.s_c), LOG2E))
        A("s_mov_b32 %s, 0x%x" % (s(self.s_c + 1), LOG2E))
        A("v_lshlrev_b32 %s, 4, %s" % (v(self.vL16), v(l)))
        A("s_lshl_b32 %s, %s, 2" % (s(self.s_t2), s(self.s_hg)))
        A("s_add_u32 %s, %s, %s" % (s(self.s_t2), s(self.s_t2), s(self.s_w)))
        A("s_mul_i32 %s, %s, 800" % (s(self.s_t0), s(self.s_t2)))
        A("s_lshl_b32 %s, %s, 10" % (s(self.s_t1), s(self.s_w)))
        A("s_add_u32 m0, %s, %d" % (s(self.s_t1), PHIST))
        A("s_nop 0")
        A("buffer_load_dwordx4 %s, %s, %s offen lds" % (v(self.vL16), s(self.sAUX, 4), s(self.s_t0)), "phi")
        A("s_lshl_b32 %s, %s, 5" % (s(self.s_t0), s(self.s_br)))
        A("s_add_u32 %s, %s, %s" % (s(self.s_t0), s(self.s_t0), s(self.s_t2)))
        A("s_mul_i32 %s, %s, %d" % (s(self.s_part), s(self.s_t0), 16 * PSTR))
        A("s_mul_i32 %s, %s, %d" % (s(self.s_red), s(self.s_t0), PSTR))
        A("s_add_u32 %s, %s, 0x%x" % (s(self.s_red), s(self.s_red), RED))
        A("s_lshl_b32 %s, %s, 4" % (s(self.s_t0), s(self.s_br)))
        A("s_add_u32 %s, %s, %s" % (s(self.s_t1), s(self.s_t0), s(self.s_rb)))
        A("s_lshl_b32 %s, %s, 5" % (s(self.s_t1), s(self.s_t1)))
        A("s_add_u32 %s, %s, %s" % (s(self.s_t1), s(self.s_t1), s(self.s_t2)))
        A("s_mul_i32 %s, %s, 5120" % (s(self.s_ost), s(self.s_t1)))
        A("s_add_u32 %s, %s, 0x%x" % (s(self.s_ost), s(self.s_ost), OBUF))
        A("s_and_b32 %s, s2, 3" % s(self.s_t1))
        A("s_lshl_b32 %s, %s, 2" % (s(self.s_t1), s(self.s_t1)))
        A("s_and_b32 %s, %s, 3" % (s(self.s_t2), s(self.s_slot)))
        A("s_add_u32 %s, %s, %s" % (s(self.s_t1), s(self.s_t1), s(self.s_t2)))
        A("s_add_u32 %s, %s, %s" % (s(self.s_t0), s(self.s_t0), s(self.s_t1)))
        A("s_mul_i32 %s, %s, 163840" % (s(self.s_old), s(self.s_t0)))
        A("s_add_u32 %s, %s, 0x%x" % (s(self.s_old), s(self.s_old), OBUF))
        A("s_mul_i32 %s, %s, 327680" % (s(self.s_outb), s(self.s_t1)))
        A("s_lshr_b32 %s, %s, 2" % (s(self.s_t0), s(self.s_slot)))
        A("s_mul_i32 %s, %s, 160" % (s(self.s_wob), s(self.s_t0)))
        A("s_add_u32 %s, %s, %s" % (s(self.s_outb), s(self.s_outb), s(self.s_wob)))
        A("s_mul_i32 %s, %s, 1280" % (s(self.s_t1), s(self.s_br)))
        A("s_add_u32 %s, %s, %s" % (s(self.s_outb), s(self.s_outb), s(self.s_t1)))
        A("s_lshl_b32 %s, %s, 1" % (s(self.s_t2), s(self.s_t2)))
        A("s_add_u32 %s, %s, %s" % (s(self.s_t0), s(self.s_t0), s(self.s_t2)))
        A("s_lshl_b32 %s, %s, 1" % (s(self.s_t0), s(self.s_t0)))
        A("s_and_b32 %s, %s, 15" % (s(self.s_rot), s(self.s_t0)))
        A("s_lshl_b32 %s, %s, 2" % (s(self.s_t0), s(self.s_w)))
        A("s_sub_u32 %s, %s, %s" % (s(self.s_t0), s(self.s_rb), s(self.s_t0)))
        A("s_and_b32 %s, %s, 15" % (s(self.s_slice), s(self.s_t0)))
        A("v_lshrrev_b32 %s, 4, %s" % (v(g), v(l)))
        A("v_and_b32 %s, 15, %s" % (v(i16), v(l)))
        A("v_lshrrev_b32 %s, 5, %s" % (v(hf), v(l)))
        A("v_and_b32 %s, 31, %s" % (v(s32), v(l)))
        A("v_mov_b32 %s, 0x%x" % (v(oob), OOB))
        A("v_bfe_u32 %s, %s, 2, 2" % (v(r_), v(l)))
        A("v_and_b32 %s, 3, %s" % (v(c_), v(l)))
        dd = T + 15
        A("v_lshrrev_b32 %s, 3, %s" % (v(T), v(s32)))
        A("v_lshl_add_u32 %s, %s, 2, %s" % (v(T), v(T), v(c_)))
        A("v_bfe_u32 %s, %s, 2, 1" % (v(T + 1), v(l)))
        A("v_lshl_add_u32 %s, %s, 3, %s" % (v(T + 2), v(T + 1), v(T)))
        A("v_add_u32 %s, 8, %s" % (v(T + 3), v(T)))
        A("v_min_u32 %s, 20, %s" % (v(T + 3), v(T + 3)))
        A("v_cmp_gt_u32 vcc, 8, %s" % v(T))
        A("v_mul_u32_u24 %s, 10, %s" % (v(T + 4), v(T + 1)))
        A("v_min_u32 %s, 9, %s" % (v(T + 5), v(T)))
        A("v_cndmask_b32 %s, %s, %s, vcc" % (v(dd), v(T + 3), v(T + 2)))
        ff = T + 16
        A("v_add_u32 %s, %s, %s" % (v(ff), v(T + 4), v(T + 5)))
        A("s_cmp_eq_u32 %s, 0" % s(self.s_br))
        A("s_cbranch_scc0 L_setB")
        A("v_mov_b32 %s, %s" % (v(self.vP0), v(self.vL16)))
        A("v_mul_u32_u24 %s, 80, %s" % (v(T), v(g)))
        A("v_lshl_add_u32 %s, %s, 4, %s" % (v(T), v(i16), v(T)))
        A("v_cmp_gt_u32 vcc, 5, %s" % v(i16))
        A("v_add_u32 %s, 1024, %s" % (v(T), v(T)))
        A("v_add_u32 %s, 1344, %s" % (v(T + 1), v(self.vL16)))
        A("v_cndmask_b32 %s, %s, %s, vcc" % (v(self.vP1), v(oob), v(T)))
        A("v_cmp_gt_u32 vcc, 16, %s" % v(dd))
        A("v_mov_b32 %s, 80" % v(T + 2))
        A("v_mov_b32 %s, 768" % v(T + 3))
        A("v_mov_b32 %s, 256" % v(T + 4))
        A("v_cndmask_b32 %s, %s, %s, vcc" % (v(T + 2), v(T + 2), v(T + 4)))
        A("v_cndmask_b32 %s, %s, 0, vcc" % (v(T + 3), v(T + 3)))
        A("v_lshl_add_u32 %s, %s, 4, %s" % (v(T + 3), v(dd), v(T + 3)))
        A("v_mad_u32_u24 %s, %s, %s, %s" % (v(self.vK), v(hf), v(T + 2), v(T + 3)))
        A("v_lshl_add_u32 %s, %s, 1, %s" % (v(self.vK + 1), v(T + 2), v(self.vK)))
        A("v_lshlrev_b32 %s, 3, %s" % (v(T + 2), v(hf)))
        A("v_lshl_add_u32 %s, %s, 4, %s" % (v(T + 2), v(dd), v(T + 2)))
        A("v_add_u32 %s, 1344, %s" % (v(self.vK + 2), v(T + 2)))
        A("v_and_b32 %s, 1, %s" % (v(T + 2), v(l)))
        A("v_mul_u32_u24 %s, 1280, %s" % (v(self.vT2), v(T + 2)))
        A("v_mov_b32 %s, 0" % v(self.vEps))
        A("s_mov_b32 %s, 104" % s(self.s_t0))
        A("s_mov_b32 %s, 7" % s(self.s_t1))
        A("s_branch L_setJ")
        A.label("L_setB")
        A("v_mul_u32_u24 %s, 336, %s" % (v(T + 2), v(hf)))
        A("v_cmp_gt_u32 vcc, 21, %s" % v(s32))
        A("v_lshl_add_u32 %s, %s, 4, %s" % (v(T), v(s32), v(T + 2)))
        A("v_mov_b32 %s, %s" % (v(self.vP1), v(oob)))
        A("v_cndmask_b32 %s, %s, %s, vcc" % (v(self.vP0), v(oob), v(T)))
        A("v_add_u32 %s, 672, %s" % (v(T + 1), v(self.vL16)))
        A("v_lshl_add_u32 %s, %s, 4, %s" % (v(self.vK), v(dd), v(T + 2)))
        A("v_cmp_gt_u32 vcc, 32, %s" % v(l))
        A("v_lshlrev_b32 %s, 4, %s" % (v(T + 2), v(dd)))
        A("v_add_u32 %s, 672, %s" % (v(T + 2), v(T + 2)))
        A("v_mov_b32 %s, %s" % (v(self.vK + 1), v(oob)))
        A("v_cndmask_b32 %s, %s, %s, vcc" % (v(self.vK + 2), v(oob), v(T + 2)))
        A("v_mov_b32 %s, 0" % v(self.vT2))
        A("v_mov_b32 %s, 0x%x" % (v(self.vEps), EPS))
        A("s_mov_b32 %s, 62" % s(self.s_t0))
        A("s_mov_b32 %s, 4" % s(self.s_t1))
        A.label("L_setJ")
        A("s_nop 1")
        A("v_cmp_gt_u32 vcc, 21, %s" % v(l))
        A("v_mov_b32 %s, %s" % (v(self.vEps + 1), v(self.vEps)))
        A("v_mov_b32 %s, %s" % (v(self.vEps + 2), v(self.vEps)))
        A("v_cndmask_b32 %s, %s, %s, vcc" % (v(self.vP2), v(oob), v(T + 1)))
        A("v_mov_b32 %s, %s" % (v(self.vEps + 3), v(self.vEps)))
        A("s_lshl_b32 %s, %s, 4" % (s(self.s_t2), s(self.s_slice)))
        A("v_add_u32 %s, %s, %s" % (v(T), s(self.s_t2), v(i16)))
        A("v_min_u32 %s, %s, %s" % (v(T), s(self.s_t0), v(T)))
        A("v_lshlrev_b32 %s, 4, %s" % (v(T), v(T)))
        A("v_mul_u32_u24 %s, %d, %s" % (v(T + 1), PSTR, v(g)))
        A("v_add_u32 %s, %s, %s" % (v(self.vRl), v(T), v(T + 1)))
        A("s_cmp_lt_u32 %s, %s" % (s(self.s_slice), s(self.s_t1)))
        A("s_cselect_b32 %s, 16, 0" % s(self.s_t2))
        A("s_cselect_b32 %s, 1, 0" % s(self.s_slice))
        A("v_cmp_gt_u32 vcc, %s, %s" % (s(self.s_t2), v(l)))
        A("v_mov_b32 %s, -1" % v(T + 4))
        A("v_mov_b32 %s, -1" % v(T + 5))
        A("v_cndmask_b32 %s, %s, %s, vcc" % (v(self.vRs), v(oob), v(T)))
        A("v_mov_b32 %s, -1" % v(T + 6))
        A("v_mov_b32 %s, -1" % v(T + 7))
        A("s_mul_i32 %s, %s, %d" % (s(self.s_t0), s(self.s_rb), PSTR))
        A("s_add_u32 %s, %s, %s" % (s(self.s_t0), s(self.s_t0), s(self.s_part)))
        A("s_add_u32 %s, %s, 4096" % (s(self.s_t1), s(self.s_ost)))
        for r in (self.vP0, self.vP1, self.vP2):
            A("buffer_store_dwordx4 %s, %s, %s, %s offen sc1" % (v(T + 4, 4), v(r), s(self.sWS, 4), s(self.s_t0)), "clr")
        A("buffer_store_dwordx4 %s, %s, %s, %s offen sc1" % (v(T + 4, 4), v(self.vRs), s(self.sWS, 4), s(self.s_red)), "clr")
        for u in range(4):
            A("buffer_store_dwordx4 %s, %s, %s, %s offen offset:%d sc1" % (v(T + 4, 4), v(self.vL16), s(self.sWS, 4), s(self.s_ost), 1024 * u), "clr")
        A("buffer_store_dwordx4 %s, %s, %s, %s offen sc1" % (v(T + 4, 4), v(self.vL16), s(self.sWS, 4), s(self.s_t1)), "clr")
        A("v_lshrrev_b32 %s, 2, %s" % (v(T), v(l)))
        A("v_mul_u32_u24 %s, 160, %s" % (v(T), v(T)))
        A("v_lshl_add_u32 %s, %s, 3, %s" % (v(self.vWr), v(c_), v(T)))
        A("v_add_u32 %s, 0x10000, %s" % (v(self.vWr + 1), v(self.vWr)))
        A("v_add_u32 %s, 0x20000, %s" % (v(self.vWr + 2), v(self.vWr)))
        A("v_lshrrev_b32 %s, 1, %s" % (v(T), v(i16)))
        A("v_xor_b32 %s, %s, %s" % (v(T), v(T), v(g)))
        A("v_lshlrev_b32 %s, 4, %s" % (v(T), v(T)))
        A("v_lshl_add_u32 %s, %s, 7, %s" % (v(T), v(i16), v(T)))
        A("v_add_u32 %s, %s, %s" % (v(self.vXr), s(self.s_m0b), v(T)))
        A("v_add_u32 %s, 0x10000, %s" % (v(self.vXr + 1), v(self.vXr)))
        A("v_xor_b32 %s, 64, %s" % (v(self.vXr + 2), v(self.vXr)))
        A("v_add_u32 %s, 0x10000, %s" % (v(self.vXr + 3), v(self.vXr + 2)))
        A("s_mul_i32 %s, %s, 1280" % (s(self.s_t0), s(self.s_w)))
        A("v_mul_u32_u24 %s, 40, %s" % (v(T), v(i16)))
        A("v_add_u32 %s, %s, %s" % (v(T), s(self.s_t0), v(T)))
        for j in range(5):
            A("v_add_u32 %s, %d, %s" % (v(T + 1), 4 * j, v(g)))
            A("v_mul_u32_u24 %s, 52, %s" % (v(T + 2), v(T + 1)))
            A("v_lshrrev_b32 %s, 8, %s" % (v(T + 2), v(T + 2)))
            A("v_mul_u32_u24 %s, 5080, %s" % (v(T + 2), v(T + 2)))
            A("v_lshl_add_u32 %s, %s, 3, %s" % (v(T + 2), v(T + 1), v(T + 2)))
            A("v_add_u32 %s, %s, %s" % (v(self.vEx + j), v(T + 2), v(T)))
        A("s_mul_i32 %s, %s, 5120" % (s(self.s_t0), s(self.s_w)))
        A("v_mul_u32_u24 %s, 40, %s" % (v(T), v(s32)))
        A("v_add_u32 %s, %s, %s" % (v(T), s(self.s_t0), v(T)))
        A("v_lshl_add_u32 %s, %s, 4, %s" % (v(self.vHr0), v(hf), v(T)))
        A("v_add_u32 %s, 32, %s" % (v(self.vHr4), v(T)))
        A("v_mul_u32_u24 %s, 40, %s" % (v(T), v(l)))
        A("v_add_u32 %s, %s, %s" % (v(self.vPw), s(self.s_t0), v(T)))
        A("v_bfe_u32 %s, %s, 2, 3" % (v(T), v(l)))
        A("v_lshlrev_b32 %s, 1, %s" % (v(T + 1), v(hf)))
        A("v_lshl_add_u32 %s, %s, 2, %s" % (v(T), v(T), v(T + 1)))
        A("v_mul_u32_u24 %s, 40, %s" % (v(T), v(T)))
        A("v_add_u32 %s, %s, %s" % (v(T), s(self.s_t0), v(T)))
        A("v_lshl_add_u32 %s, %s, 3, %s" % (v(self.vTm), v(c_), v(T)))
        A("v_add3_u32 %s, %s, %s, 32" % (v(self.vT2), v(self.vT2), v(T)))
        A("v_cmp_eq_u32 vcc, 0, %s" % v(c_))
        A("v_mov_b32 %s, %d" % (v(T + 1), ONES))
        for u in range(4):
            for aa in range(2):
                A("v_add_u32 %s, %d, %s" % (v(T + 2), VBUF + 32 + u * 1280 + 40 * aa, v(T)))
                A("v_cndmask_b32 %s, %s, %s, vcc" % (v(self.vVd + 2 * u + aa), v(T + 1), v(T + 2)))
        A("v_mov_b32 %s, 0x3f803f80" % v(T + 2))
        A("v_mov_b32 %s, 0x3f803f80" % v(T + 3))
        A("ds_write_b64 %s, %s" % (v(T + 1), v(T + 2, 2)))
        A("v_mov_b32 %s, 0x3f80" % v(T + 2))
        A("v_and_b32 %s, 1, %s" % (v(T + 3), v(l)))
        A("v_lshlrev_b32 %s, 4, %s" % (v(T + 3), v(T + 3)))
        A("v_lshlrev_b32 %s, %s, %s" % (v(T + 2), v(T + 3), v(T + 2)))
        A("v_lshrrev_b32 %s, 1, %s" % (v(T + 3), v(i16)))
        for q in range(4):
            A("v_cmp_eq_u32 vcc, %d, %s" % (q, v(T + 3)))
            A("v_cndmask_b32 %s, 0, %s, vcc" % (v(self.vSel + q), v(T + 2)))
        for j in range(5):
            p = self.vOa + j
            A("v_bfe_u32 %s, %s, 2, 2" % (v(T), v(p)))
            A("v_lshrrev_b32 %s, 4, %s" % (v(T + 1), v(p)))
            A("v_and_b32 %s, 3, %s" % (v(T + 2), v(p)))
            A("v_lshl_add_u32 %s, %s, 1, %s" % (v(T + 3), v(T), v(T + 1)))
            A("v_mad_u32_u24 %s, %s, 20, %s" % (v(T + 3), v(T + 3), v(T + 2)))
            A("v_add_u32 %s, 16, %s" % (v(T + 3), v(T + 3)))
            A("v_lshl_add_u32 %s, %s, 2, %s" % (v(T + 2), v(T + 1), v(T + 2)))
            A("v_lshl_add_u32 %s, %s, 3, %s" % (v(T + 2), v(T), v(T + 2)))
            A("v_lshrrev_b32 %s, 1, %s" % (v(T), v(T)))
            A("v_lshl_add_u32 %s, %s, 2, %s" % (v(T + 2), v(T), v(T + 2)))
            A("v_mul_u32_u24 %s, 1280, %s" % (v(T + 2), v(T + 2)))
            A("v_mul_u32_u24 %s, 1280, %s" % (v(T + 3), v(T + 3)))
            A("v_add_u32 %s, %s, %s" % (v(p), v(T + 2), v(self.vOl + j)))
            A("v_add_u32 %s, %s, %s" % (v(self.vOl + j), v(T + 3), v(self.vOl + j)))
        A("s_lshr_b32 %s, %s, 1" % (s(self.s_t0), s(self.s_w)))
        A("s_and_b32 %s, %s, 1" % (s(self.s_t1), s(self.s_w)))
        A("s_lshl_b32 %s, %s, 10" % (s(self.s_t2), s(self.s_t0)))
        A("s_lshl_b32 %s, %s, 8" % (s(self.s_t1), s(self.s_t1)))
        A("s_add_u32 %s, %s, %s" % (s(self.s_t2), s(self.s_t2), s(self.s_t1)))
        A("v_and_b32 %s, 1, %s" % (v(T + 1), v(g)))
        A("v_mul_u32_u24 %s, 5120, %s" % (v(T), v(hf)))
        A("v_lshl_add_u32 %s, %s, 9, %s" % (v(T), v(T + 1), v(T)))
        A("v_lshl_add_u32 %s, %s, 4, %s" % (v(T), v(i16), v(T)))
        A("v_add_u32 %s, %s, %s" % (v(self.vOm), s(self.s_t2), v(T)))
        A("s_lshl_b32 %s, %s, 8" % (s(self.s_t2), s(self.s_w)))
        A("s_add_u32 %s, %s, 4096" % (s(self.s_t2), s(self.s_t2)))
        A("v_mul_u32_u24 %s, 10240, %s" % (v(T), v(g)))
        A("v_lshl_add_u32 %s, %s, 4, %s" % (v(T), v(i16), v(T)))
        A("v_add_u32 %s, %s, %s" % (v(self.vOx), s(self.s_t2), v(T)))
        A("v_add_u32 %s, 5120, %s" % (v(self.vOx + 1), v(self.vOx)))
        A("s_mul_i32 %s, %s, 40960" % (s(self.s_t2), s(self.s_w)))
        A("s_add_u32 %s, %s, %s" % (s(self.s_outb), s(self.s_outb), s(self.s_t2)))
        A("v_mul_u32_u24 %s, 2560, %s" % (v(T), v(i16)))
        A("v_lshl_add_u32 %s, %s, 4, %s" % (v(T), v(hf), v(T)))
        A("v_lshl_add_u32 %s, %s, 5, %s" % (v(self.vSo), v(T + 1), v(T)))
        A("v_mul_u32_u24 %s, 163840, %s" % (v(T + 1), v(T + 1)))
        A("v_add3_u32 %s, %s, %s, 64" % (v(T), v(T), v(T + 1)))
        A("v_add_u32 %s, 64, %s" % (v(self.vSo4), v(T)))
        self.vPg = T + 17
        A("s_lshl_b32 %s, %s, 10" % (s(self.s_t0), s(self.s_w)))
        A("s_add_u32 %s, %s, %d" % (s(self.s_t0), s(self.s_t0), PHIST))
        A("v_lshlrev_b32 %s, 1, %s" % (v(T), v(ff)))
        A("v_add_u32 %s, %s, %s" % (v(self.vPg + 1), s(self.s_t0), v(T)))
        A("v_mul_u32_u24 %s, 320, %s" % (v(T), v(hf)))
        A("v_add_u32 %s, %s, %s" % (v(self.vPg), v(self.vPg + 1), v(T)))
        self.vHfKeep = hf

    def phi_frags(self):
        T = self.vT + 20
        it = [lambda: self.A.wait_tag("phi")]
        for j in range(8):
            it.append("ds_read_u16 %s, %s offset:%d" % (v(T + j), v(self.vPg), 40 * j))
        for j in range(4):
            it.append("ds_read_u16 %s, %s offset:%d" % (v(T + 8 + j), v(self.vPg + 1), 640 + 40 * j))
        it.append("v_cmp_eq_u32 vcc, 0, %s" % v(self.vHfKeep))
        for q in range(6):
            it.append("v_lshl_or_b32 %s, %s, 16, %s" % (v(self.vPhi + q), v(T + 2 * q + 1), v(T + 2 * q)))
        for q in (4, 5):
            it.append("v_cndmask_b32 %s, 0, %s, vcc" % (v(self.vPhi + q), v(self.vPhi + q)))
        return it

    def frag_reads(self, f, off):
        r = self.vF + 4 * (f % 8)
        out = []
        for aa in range(2):
            reg, imm = self.ds(self.vWr, off + 2560 * aa)
            out.append("ds_read_b64_tr_b16 %s, %s offset:%d" % (v(r + 2 * aa, 2), reg, imm))
        return out

    def pass1(self):
        A = self.A
        RD = self.opt["RD"]

        def off(f):
            t, ks, j = f // 20, (f % 20) // 10, f % 10
            return (t % 3) * SLOT + (2 * (j // 5) + ks) * 9216 + 4096 + 32 * (j % 5)

        def mfmas(f):
            t, ks, j = f // 20, (f % 20) // 10, f % 10
            o = []
            for rt in range(2):
                acc = self.vAcc + 8 * j + 4 * rt
                c = v(acc, 4) if f >= 10 else (v(self.vEps, 4) if j < 5 else "0")
                o.append("v_mfma_f32_16x16x32_bf16 %s, %s, %s, %s" % (v(acc, 4), v(self.vF + 4 * (f % 8), 4), a(16 * t + 8 * ks + 4 * rt, 4), c))
            return o

        def boundary(t):
            o = [lambda: A.wait_tag("c%d" % t, lg0=True)]
            if t == 2:
                o.append(lambda: A.wait_tag("clr"))
            for ks in range(2):
                for rt in range(2):
                    reg, imm = self.ds(self.vXr + 2 * ks, (t % 3) * SLOT + 2048 * rt)
                    o.append("ds_read_b128 %s, %s offset:%d" % (a(16 * t + 8 * ks + 4 * rt, 4), reg, imm))
            o.append("s_barrier")
            return o

        self.emit(boundary(0))
        self.stamp()
        for t in range(10):
            main = []
            lo = 20 * t - RD
            for f in range(lo, lo + 20):
                main += self.frag_reads(f + RD, off(f + RD))
                if f >= 0:
                    main += mfmas(f)
            if t < 8:
                side = self.dma_chunk(t + 2)
            else:
                side = []
                if t == 8:
                    side.append("s_mul_i32 %s, %s, 5120\ns_mov_b32 %s, %s" % (s(self.s_m0b), s(self.s_w), s(self.s_wbase), s(self.s_cnt)))
                side += self.dma_wq(t - 8)
            if t == 1:
                side = side + self.phi_frags()
            if t == 2:
                side = [self.count_in] + side
            self.emit(merge(main, side, 2, len(main) - 6))
            if t < 9:
                self.emit(boundary(t + 1))
        for f in range(200 - RD, 200):
            self.emit(mfmas(f))
        self.stamp()

    def count_in(self):
        A = self.A
        A("s_cmp_eq_u32 %s, 0" % s(self.s_w))
        A("s_cbranch_scc0 L_nocnt")
        A.begin_cond("cnt")
        A("s_lshl_b32 %s, %s, 7" % (s(self.s_t2), s(self.s_br)))
        A("s_mov_b64 exec, 1")
        A("v_mov_b32 %s, 1" % v(self.vCnt))
        A("buffer_atomic_add %s, off, %s, %s sc1" % (v(self.vCnt), s(self.sDBG, 4), s(self.s_t2)))
        A("s_mov_b64 exec, -1")
        A.end_cond()
        A.label("L_nocnt")

    def elu(self, acc, n):
        T = self.vT
        it = []
        for b in range(0, n, 8):
            for k in range(0, 8, 2):
                it.append("v_pk_fma_f32 %s, %s, %s, %s op_sel_hi:[1,1,0]" % (v(T + k, 2), v(acc + b + k, 2), s(self.s_c, 2), v(self.vPhi, 2)))
            for k in range(8):
                it.append("v_exp_f32_e64 %s, %s clamp" % (v(T + k), v(T + k)))
                it.append("v_max_f32_e64 %s, %s, %s" % (v(acc + b + k), v(acc + b + k), v(self.vEps)))
            for k in range(0, 8, 2):
                it.append("v_pk_add_f32 %s, %s, %s" % (v(acc + b + k, 2), v(acc + b + k, 2), v(T + k, 2)))
        return it

    def exch_write(self, acc, buf):
        it = []
        for j in range(5):
            for rt in range(2):
                r = acc + 8 * j + 4 * rt
                it.append("v_cvt_pk_bf16_f32 %s, %s, %s" % (v(r), v(r), v(r + 1)))
                it.append("v_cvt_pk_bf16_f32 %s, %s, %s" % (v(r + 1), v(r + 2), v(r + 3)))
                it.append("ds_write_b64 %s, %s offset:%d" % (v(self.vEx + j), v(r, 2), buf + 640 * rt))
        return it

    def head_reads(self, dst, u):
        return ["ds_read_b64 %s, %s offset:%d" % (v(dst, 2), v(self.vHr0), KBUF + 1280 * u),
                "ds_read_b64 %s, %s offset:%d" % (v(dst + 2, 2), v(self.vHr0), KBUF + 1280 * u + 8),
                "ds_read_b64 %s, %s offset:%d" % (v(dst + 4, 2), v(self.vHr4), KBUF + 1280 * u)]

    def feat_mfma(self, D, src):
        return ["v_mfma_f32_32x32x16_bf16 %s, %s, %s, 0" % (v(D, 16), v(self.vPhi, 4), v(src, 4)),
                "v_mfma_f32_32x32x8_bf16 %s, %s, %s, %s" % (v(D, 16), v(self.vPhi + 4, 2), v(src + 4, 2), v(D, 16))]

    def softmax(self, P, E, out):
        m, n = P + 10, P + 12
        it = []
        it.append("v_max3_f32 %s, %s, %s, %s" % (v(m), v(P), v(P + 1), v(P + 2)))
        it.append("v_max3_f32 %s, -%s, -%s, -%s" % (v(n), v(P), v(P + 1), v(P + 2)))
        for k in (3, 5, 7):
            it.append("v_max3_f32 %s, %s, %s, %s" % (v(m), v(m), v(P + k), v(P + k + 1)))
            it.append("v_max3_f32 %s, %s, -%s, -%s" % (v(n), v(n), v(P + k), v(P + k + 1)))
        it.append("v_max_f32_e64 %s, %s, %s" % (v(m), v(m), v(P + 9)))
        it.append("v_max_f32_e64 %s, %s, -%s" % (v(n), v(n), v(P + 9)))
        it.append("v_permlane32_swap_b32 %s, %s" % (v(m), v(n)))
        it.append("v_max_f32 %s, %s, %s" % (v(m), v(m), v(n)))
        it.append("v_mul_f32 %s, %s, %s" % (v(n), s(self.s_c), v(m)))
        it.append("v_mul_f32 %s, %s, %s" % (v(m), s(self.s_c), v(m)))
        it.append("v_permlane32_swap_b32 %s, %s" % (v(m), v(n)))
        for k in range(0, 10, 2):
            it.append("v_pk_fma_f32 %s, %s, %s, %s op_sel_hi:[1,1,0] neg_lo:[0,1,1] neg_hi:[0,1,1]" % (v(E + k, 2), v(P + k, 2), s(self.s_c, 2), v(n, 2)))
            it.append("v_pk_fma_f32 %s, %s, %s, %s op_sel_hi:[1,1,0] neg_lo:[0,0,1] neg_hi:[0,0,1]" % (v(P + k, 2), v(P + k, 2), s(self.s_c, 2), v(m, 2)))
        for k in range(10):
            it.append("v_exp_f32 %s, %s" % (v(E + k), v(E + k)))
            it.append("v_exp_f32 %s, %s" % (v(P + k), v(P + k)))
        it.append("v_pk_add_f32 %s, %s, %s" % (v(n, 2), v(E, 2), v(E + 2, 2)))
        it.append("v_pk_add_f32 %s, %s, %s" % (v(m, 2), v(P, 2), v(P + 2, 2)))
        for k in (4, 6, 8):
            it.append("v_pk_add_f32 %s, %s, %s" % (v(n, 2), v(n, 2), v(E + k, 2)))
            it.append("v_pk_add_f32 %s, %s, %s" % (v(m, 2), v(m, 2), v(P + k, 2)))
        it.append("v_add_f32 %s, %s, %s" % (v(n), v(n), v(n + 1)))
        it.append("v_add_f32 %s, %s, %s" % (v(m), v(m), v(m + 1)))
        it.append("v_permlane32_swap_b32 %s, %s" % (v(m), v(n)))
        it.append("v_add_f32 %s, %s, %s" % (v(m), v(m), v(n)))
        it.append("v_rcp_f32 %s, %s" % (v(m), v(m)))
        it.append("v_mov_b32 %s, %s" % (v(n), v(m)))
        it.append("v_permlane32_swap_b32 %s, %s" % (v(m), v(n)))
        for k in range(0, 10, 2):
            it.append("v_pk_mul_f32 %s, %s, %s op_sel_hi:[1,0]" % (v(P + k, 2), v(P + k, 2), v(m, 2)))
            it.append("v_pk_mul_f32 %s, %s, %s op_sel_hi:[1,0]" % (v(E + k, 2), v(E + k, 2), v(n, 2)))
        for k in range(5):
            it.append("v_cvt_pk_bf16_f32 %s, %s, %s" % (v(out + k), v(P + 2 * k), v(P + 2 * k + 1)))
        for k in range(5):
            it.append("v_cvt_pk_bf16_f32 %s, %s, %s" % (v(out + 5 + k), v(E + 2 * k), v(E + 2 * k + 1)))
        return it

    def tr2(self, dst, reg, off):
        return ["ds_read_b64_tr_b16 %s, %s offset:%d" % (v(dst + 2 * aa, 2), v(reg), off + 40 * aa) for aa in range(2)]

    def v_reads(self, dst, u):
        o = self.tr2(dst, self.vTm, VBUF + 1280 * u)
        o += ["ds_read_b64_tr_b16 %s, %s" % (v(dst + 4 + 2 * aa, 2), v(self.vVd + 2 * u + aa)) for aa in range(2)]
        return o

    def kpath(self, isA):
        A = self.A
        acc, T = self.vAcc, self.vT
        A("s_lshl_b32 %s, %s, 7" % (s(self.s_t2), s(self.s_br)))
        A("buffer_load_dword %s, off, %s, %s sc1" % (v(self.vCnt), s(self.sDBG, 4), s(self.s_t2)), "cnt")
        wq2 = self.dma_wq(2)
        if isA:
            self.emit(merge(self.exch_write(acc, KBUF) + self.exch_write(acc + 40, VBUF), wq2))
        else:
            A("v_mov_b32 %s, 0x%x" % (v(self.vPhi), NEPSC))
            self.emit(merge(self.exch_write(acc + 40, VBUF) + self.elu(acc, 40) + self.exch_write(acc, KBUF), wq2))
        A.wait_lg()
        A("s_barrier")
        self.stamp()
        side = self.dma_wq(3) + self.dma_wq(4)
        nft = 3 if isA else 2
        KVD = T
        FA = self.vF
        FV = self.vF + 12

        def kv_step(u, phoff):
            o = []
            if isA:
                o += self.tr2(FA, self.vTm, phoff) + self.tr2(FA + 4, self.vTm, phoff + 1280) + self.tr2(FA + 8, self.vT2, phoff)
            else:
                o += self.tr2(FA, self.vTm, phoff) + self.tr2(FA + 4, self.vT2, phoff)
            o += self.v_reads(FV, u)
            for ft in range(nft):
                for dt in range(2):
                    d = KVD + 8 * ft + 4 * dt
                    o.append("v_mfma_f32_16x16x32_bf16 %s, %s, %s, %s" % (v(d, 4), v(FA + 4 * ft, 4), v(FV + 4 * dt, 4), v(d, 4) if u else "0"))
            return o

        if isA:
            KF = T + 24
            P = [acc, acc + 16]
            E = [acc + 32, acc + 42]
            O = [acc + 52, acc + 62]
            main = []
            for u in range(4):
                main += self.head_reads(KF + 6 * u, u)
            for h in range(2):
                main += self.feat_mfma(P[0], KF + 12 * h) + self.feat_mfma(P[1], KF + 12 * h + 6)
                main += rr(self.softmax(P[0], E[0], O[0]), self.softmax(P[1], E[1], O[1]))
                for x in range(2):
                    for j in range(5):
                        main.append("ds_write_b64 %s, %s offset:%d" % (v(self.vPw), v(O[x] + 2 * j, 2), KBUF + 2560 * x + 8 * j))
                for x in range(2):
                    main += kv_step(2 * h + x, KBUF + 2560 * x)
            self.emit(merge(main, side, 16, 200))
        else:
            main = []
            for u in range(4):
                main += kv_step(u, KBUF + 1280 * u)
            self.emit(merge(main, side))
        A("s_mul_i32 %s, %s, %d" % (s(self.s_t0), s(self.s_rb), PSTR))
        A("s_add_u32 %s, %s, %s" % (s(self.s_t0), s(self.s_t0), s(self.s_part)))
        G = self.vF
        if isA:
            pairs = [((0, 0), (1, 0), self.vP0), ((0, 1), (1, 1), self.vP1), ((2, 0), (2, 1), self.vP2)]
        else:
            pairs = [((0, 0), (0, 1), self.vP0), ((1, 0), (1, 1), self.vP2)]
        for i, (p, q, ad) in enumerate(pairs):
            for x, (ft, dt) in enumerate((p, q)):
                d = KVD + 8 * ft + 4 * dt
                A("v_cvt_pk_bf16_f32 %s, %s, %s" % (v(G + 4 * i + 2 * x), v(d), v(d + 1)))
                A("v_cvt_pk_bf16_f32 %s, %s, %s" % (v(G + 4 * i + 2 * x + 1), v(d + 2), v(d + 3)))
        for i, (p, q, ad) in enumerate(pairs):
            A("v_permlane16_swap_b32 %s, %s" % (v(G + 4 * i), v(G + 4 * i + 2)))
            A("v_permlane16_swap_b32 %s, %s" % (v(G + 4 * i + 1), v(G + 4 * i + 3)))
        for i, (p, q, ad) in enumerate(pairs):
            A("buffer_store_dwordx4 %s, %s, %s, %s offen sc1" % (v(G + 4 * i, 4), v(ad), s(self.sWS, 4), s(self.s_t0)), "pub")
        self.stamp()

    def spin(self, name, loads, check, bound=4000, sleep=2):
        t = "%s_slow:\n    s_mov_b32 %s, 0\n%s_again:\n    s_sleep %d\n" % (name, s(self.s_cnt), name, sleep)
        B = Asm()
        B("s_nop 7")
        B(loads)
        B.wait_vm0()
        B(check)
        B("s_add_u32 %s, %s, 1" % (s(self.s_cnt), s(self.s_cnt)))
        B("s_cmp_lt_u32 %s, %d" % (s(self.s_cnt), bound))
        B("s_nop 3")
        t += B.text()
        t += "    s_cbranch_vccz %s_ok\n    s_cbranch_scc1 %s_again\n    s_branch %s_ok\n" % (name, name, name)
        self.slow.append(t)

    def checked(self, name, loads, check, **kw):
        A = self.A
        A(check)
        A("s_cbranch_vccnz %s_slow" % name)
        A.label("%s_ok" % name)
        self.spin(name, loads, check, **kw)

    def max_check(self, regs, tmp):
        regs = list(regs)
        t = ""
        cur = regs.pop(0)
        while regs:
            if len(regs) >= 2:
                t += "v_max3_u32 %s, %s, %s, %s\n" % (v(tmp), v(cur), v(regs[0]), v(regs[1]))
                regs = regs[2:]
            else:
                t += "v_max_u32 %s, %s, %s\n" % (v(tmp), v(cur), v(regs[0]))
                regs = []
            cur = tmp
        t += "v_cmp_eq_u32 vcc, -1, %s\n" % v(cur)
        return t

    def qpass(self, sfx):
        A = self.A
        RD = self.opt["RD"]
        T = self.vT
        RL = T
        A.wait_tag("wq", lg0=True)
        A("s_barrier")

        def off(f):
            k, j = f // 5, f % 5
            return WQ_R[k // 4] + 5120 * (k % 4) + 32 * j

        def mfmas(f):
            k, j = f // 5, f % 5
            o = []
            for rt in range(2):
                acc = self.vAcc + 8 * j + 4 * rt
                c = v(acc, 4) if f >= 5 else v(self.vEps, 4)
                o.append("v_mfma_f32_16x16x32_bf16 %s, %s, %s, %s" % (v(acc, 4), v(self.vF + 4 * (f % 8), 4), a(8 * k + 4 * rt, 4), c))
            return o

        rloads = ""
        for i in range(4):
            rloads += "s_add_u32 %s, %s, %d\n" % (s(self.s_t1), s(self.s_part), 4 * PSTR * i)
            rloads += "buffer_load_dwordx4 %s, %s, %s, %s offen sc1\n" % (v(RL + 4 * i, 4), v(self.vRl), s(self.sWS, 4), s(self.s_t1))

        def r1():
            cl = ("s_lshl_b32 %s, %s, 7\n" % (s(self.s_t2), s(self.s_br)) +
                  "buffer_load_dword %s, off, %s, %s sc1\n" % (v(self.vCnt), s(self.sDBG, 4), s(self.s_t2)))
            self.checked("L_cnt" + sfx, cl, "v_cmp_gt_u32 vcc, 128, %s\n" % v(self.vCnt))
            A("s_cmp_eq_u32 %s, 0" % s(self.s_slice))
            A("s_cbranch_scc1 L_r1" + sfx)
            A.begin_cond("red")
            A(rloads, "red")
            A.end_cond()
            A.label("L_r1" + sfx)

        def r2():
            A("s_cmp_eq_u32 %s, 0" % s(self.s_slice))
            A("s_cbranch_scc1 L_r2" + sfx)
            A.begin_cond("red")
            self.checked("L_red" + sfx, rloads, self.max_check(range(RL, RL + 16), RL + 16))
            D = RL + 16
            for i in range(4):
                A("v_mfma_f32_16x16x32_bf16 %s, %s, %s, %s" % (v(D, 4), v(self.vSel, 4), v(RL + 4 * i, 4), v(D, 4) if i else "0"))
            A("v_cvt_pk_bf16_f32 %s, %s, %s" % (v(RL), v(D), v(D + 1)))
            A("v_cvt_pk_bf16_f32 %s, %s, %s" % (v(RL + 1), v(D + 2), v(D + 3)))
            A("v_permlane16_swap_b32 %s, %s" % (v(RL), v(RL + 2)))
            A("v_permlane16_swap_b32 %s, %s" % (v(RL + 1), v(RL + 3)))
            A("buffer_store_dwordx4 %s, %s, %s, %s offen sc1" % (v(RL, 4), v(self.vRs), s(self.sWS, 4), s(self.s_red)), "red")
            A("s_nop 1")
            A.end_cond()
            A.label("L_r2" + sfx)

        main = []
        marks = {}
        for f in range(-RD, 100):
            if f >= 0 and f % 5 == 0:
                marks[f // 5] = len(main)
                if f // 5 == self.opt["r1_at"]:
                    main.append(r1)
                if f // 5 == self.opt["r2_at"]:
                    main.append(r2)
                if f // 5 == 8:
                    main.append("s_barrier")
            if f + RD < 100:
                main += self.frag_reads(f + RD, off(f + RD))
            if f >= 0:
                main += mfmas(f)
        marks[20] = len(main)
        out = merge(main[:marks[5]], self.dma_wo(0), 4)
        out += main[marks[5]:marks[8] + 2]
        out += merge(main[marks[8] + 2:marks[18]], self.dma_wo(1) + self.dma_wo(2))
        out += main[marks[18]:]
        self.emit(out)
        self.stamp()

    def qpath(self, isA, sfx):
        A = self.A
        acc, T = self.vAcc, self.vT
        KV = self.vKV
        if isA:
            kvl = ("buffer_load_dwordx4 %s, %s, %s, %s offen sc1\n" % (v(KV, 4), v(self.vK), s(self.sWS, 4), s(self.s_red)) +
                   "buffer_load_dwordx4 %s, %s, %s, %s offen sc1\n" % (v(KV + 4, 4), v(self.vK + 1), s(self.sWS, 4), s(self.s_red)) +
                   "buffer_load_dwordx2 %s, %s, %s, %s offen sc1\n" % (v(KV + 8, 2), v(self.vK + 2), s(self.sWS, 4), s(self.s_red)))
            kvr = range(KV, KV + 10)
        else:
            kvl = ("buffer_load_dwordx4 %s, %s, %s, %s offen sc1\n" % (v(KV, 4), v(self.vK), s(self.sWS, 4), s(self.s_red)) +
                   "buffer_load_dwordx2 %s, %s, %s, %s offen sc1\n" % (v(KV + 4, 2), v(self.vK + 2), s(self.sWS, 4), s(self.s_red)))
            kvr = range(KV, KV + 6)
        A(kvl, "kv")
        if not isA:
            self.emit(self.elu(acc, 40))
        self.emit(self.exch_write(acc, KBUF))
        A.wait_lg()
        A("s_barrier")
        self.stamp()
        side = self.dma_wo(3) + self.dma_wo(4)
        QF = T
        LF = T + 24
        P = [acc, acc + 16]
        E = [acc + 32, acc + 42]
        O = [acc + 52, acc + 62]
        G = [self.vF, self.vF + 4]
        X = T + 32

        def chk():
            self.checked("L_kv" + sfx, kvl, self.max_check(kvr, X))

        def num(D, src):
            if isA:
                return ["v_mfma_f32_32x32x16_bf16 %s, %s, %s, 0" % (v(D, 16), v(KV, 4), v(src, 4)),
                        "v_mfma_f32_32x32x16_bf16 %s, %s, %s, %s" % (v(D, 16), v(KV + 4, 4), v(src + 4, 4), v(D, 16)),
                        "v_mfma_f32_32x32x8_bf16 %s, %s, %s, %s" % (v(D, 16), v(KV + 8, 2), v(src + 8, 2), v(D, 16))]
            return ["v_mfma_f32_32x32x16_bf16 %s, %s, %s, 0" % (v(D, 16), v(KV, 4), v(src, 4)),
                    "v_mfma_f32_32x32x8_bf16 %s, %s, %s, %s" % (v(D, 16), v(KV + 4, 2), v(src + 4, 2), v(D, 16))]

        def fin(D, g, u):
            lf = LF + 4 * (u & 1) + 2 * (u >> 1)
            o = ["v_add_f32 %s, 0x%x, %s" % (v(D + 12), EPS, v(D + 12)),
                 "v_rcp_f32 %s, %s" % (v(D + 12), v(D + 12))]
            for k in range(0, 12, 2):
                o.append("v_pk_mul_f32 %s, %s, %s op_sel_hi:[1,0]" % (v(D + k, 2), v(D + k, 2), v(D + 12, 2)))
            for k in range(4):
                o.append("v_cvt_pk_bf16_f32 %s, %s, %s" % (v(g + k), v(D + 2 * k), v(D + 2 * k + 1)))
            o.append(("buffer_store_dwordx4 %s, %s, %s, %s offen offset:%d sc1" % (v(g, 4), v(self.vL16), s(self.sWS, 4), s(self.s_ost), 1024 * u), "ost"))
            for k in range(2):
                o.append("v_cvt_pk_bf16_f32 %s, %s, %s" % (v(lf + k), v(D + 8 + 2 * k), v(D + 9 + 2 * k)))
            return o

        main = []
        for u in range(4):
            main += self.head_reads(QF + 6 * u, u)
        for h in range(2):
            if isA:
                main += self.feat_mfma(P[0], QF + 12 * h) + self.feat_mfma(P[1], QF + 12 * h + 6)
                main += rr(self.softmax(P[0], E[0], O[0]), self.softmax(P[1], E[1], O[1]))
                src = O
            else:
                src = [QF + 12 * h, QF + 12 * h + 6]
            if h == 0:
                main.append(chk)
            main += num(P[0], src[0]) + num(P[1], src[1])
            main += rr(fin(P[0], G[0], 2 * h), fin(P[1], G[1], 2 * h + 1))
        self.emit(merge(main, side, 12, 150 if isA else len(main) - 10))
        for k in range(4):
            A("v_permlane32_swap_b32 %s, %s" % (v(LF + k), v(LF + 4 + k)))
        A("s_add_u32 %s, %s, 4096" % (s(self.s_t1), s(self.s_ost)))
        A("buffer_store_dwordx4 %s, %s, %s, %s offen sc1" % (v(LF, 4), v(self.vL16), s(self.sWS, 4), s(self.s_t1)), "ost")
        self.stamp()

    def outproj(self, sfx):
        A = self.A
        RD = self.opt["RD"]
        acc, T = self.vAcc, self.vT
        LX = acc + 40
        X = T
        A.wait_vm0()
        A("s_barrier")
        self.stamp()
        A("s_mov_b32 %s, 0" % s(self.s_slot))
        A.label("L_redo" + sfx)

        def gloads(gi):
            t = ""
            if gi < 4:
                for i in range(4 * gi, 4 * gi + 4):
                    t += "s_add_u32 %s, %s, %d\n" % (s(self.s_t0), s(self.s_rot), i)
                    t += "s_and_b32 %s, %s, 15\n" % (s(self.s_t0), s(self.s_t0))
                    t += "s_mul_i32 %s, %s, 10240\n" % (s(self.s_t0), s(self.s_t0))
                    t += "s_add_u32 %s, %s, %s\n" % (s(self.s_t0), s(self.s_t0), s(self.s_old))
                    for rt in range(2):
                        t += "buffer_load_dwordx4 %s, %s, %s, %s offen offset:%d sc1\n" % (a(8 * i + 4 * rt, 4), v(self.vOm), s(self.sWS, 4), s(self.s_t0), 2048 * rt)
            else:
                t += "s_lshr_b32 %s, %s, 2\n" % (s(self.s_t1), s(self.s_rot))
                for i in range(4):
                    t += "s_add_u32 %s, %s, %d\n" % (s(self.s_t0), s(self.s_t1), i)
                    t += "s_and_b32 %s, %s, 3\n" % (s(self.s_t0), s(self.s_t0))
                    t += "s_mul_i32 %s, %s, 40960\n" % (s(self.s_t0), s(self.s_t0))
                    t += "s_add_u32 %s, %s, %s\n" % (s(self.s_t0), s(self.s_t0), s(self.s_old))
                    for x in range(2):
                        t += "buffer_load_dwordx4 %s, %s, %s, %s offen sc1\n" % (v(LX + 8 * i + 4 * x, 4), v(self.vOx + x), s(self.sWS, 4), s(self.s_t0))
            return t

        def gcheck(gi):
            if gi < 4:
                t = ""
                for k in range(8):
                    t += "v_accvgpr_read_b32 %s, %s\n" % (v(X + k), a(32 * gi + 4 * k))
                return t + self.max_check(range(X, X + 8), X + 8)
            return self.max_check(range(LX, LX + 32, 4), X + 8)

        def off(f):
            k, j = f // 5, f % 5
            return WO_R[k // 4] + 5120 * (k % 4) + 32 * j

        def mfmas(f):
            k, j = f // 5, f % 5
            o = []
            for rt in range(2):
                d = acc + 8 * j + 4 * rt
                b = a(8 * k + 4 * rt, 4) if k < 16 else v(LX + 8 * (k - 16) + 4 * rt, 4)
                o.append("v_mfma_f32_16x16x32_bf16 %s, %s, %s, %s" % (v(d, 4), v(self.vF + 4 * (f % 8), 4), b, v(d, 4) if f >= 5 else "0"))
            return o

        def mk(gi):
            def fn():
                self.checked("L_o%d%s" % (gi, sfx), gloads(gi), gcheck(gi), bound=2000)
                if gi == 4:
                    for i in range(4):
                        A("v_swap_b32 %s, %s" % (v(LX + 8 * i + 2), v(LX + 8 * i + 4)))
                        A("v_swap_b32 %s, %s" % (v(LX + 8 * i + 3), v(LX + 8 * i + 5)))
            return fn

        A(gloads(0))
        A(gloads(1))
        for gi in range(5):
            main = []
            for f in range(20 * gi - (RD if gi == 0 else 0), 20 * gi + 20):
                if f == 20 * gi:
                    main.append(mk(gi))
                if f + RD < 100:
                    main += self.frag_reads(f + RD, off(f + RD))
                if f >= 0:
                    main += mfmas(f)
            side = gloads(gi + 2).strip().split("\n") if gi + 2 < 5 else []
            st = 2 * RD + 1 if gi == 0 else 1
            self.emit(merge(main, side, st))
        self.stamp()
        A("v_cmp_u_f32 vcc, %s, %s" % (v(acc), v(acc + 4)))
        A("s_cbranch_vccnz L_nan" + sfx)
        A.label("L_nanok" + sfx)
        self.slow.append("L_nan%s:\n    s_add_u32 %s, %s, 1\n    s_cmp_lt_u32 %s, 4\n    s_nop 7\n    s_nop 7\n    s_cbranch_scc1 L_redo%s\n    s_branch L_nanok%s\n"
                         % (sfx, s(self.s_slot), s(self.s_slot), s(self.s_slot), sfx, sfx))
        G = self.vF
        A("s_add_u32 %s, %s, 163840" % (s(self.s_t1), s(self.s_outb)))
        jobs = [((0, 0), (1, 0), self.vSo, self.s_outb, 0), ((0, 1), (1, 1), self.vSo, self.s_t1, 0),
                ((2, 0), (3, 0), self.vSo, self.s_outb, 64), ((2, 1), (3, 1), self.vSo, self.s_t1, 64),
                ((4, 0), (4, 1), self.vSo4, self.s_outb, 0)]
        for i, (p, q, ad, so, imm) in enumerate(jobs):
            g = G + 4 * i
            for x, (j, rt) in enumerate((p, q)):
                d = acc + 8 * j + 4 * rt
                A("v_cvt_pk_bf16_f32 %s, %s, %s" % (v(g + 2 * x), v(d), v(d + 1)))
                A("v_cvt_pk_bf16_f32 %s, %s, %s" % (v(g + 2 * x + 1), v(d + 2), v(d + 3)))
        for i, (p, q, ad, so, imm) in enumerate(jobs):
            g = G + 4 * i
            A("v_permlane16_swap_b32 %s, %s" % (v(g), v(g + 2)))
            A("v_permlane16_swap_b32 %s, %s" % (v(g + 1), v(g + 3)))
            A("buffer_store_dwordx4 %s, %s, %s, %s offen offset:%d" % (v(g, 4), v(ad), s(self.sOUT, 4), s(so), imm))
        self.stamp()
        if self.stamps:
            A.wait_vm0()
            self.stamp()
            self.dump_stamps()
        A("s_endpgm")

    def dump_stamps(self):
        A = self.A
        T = self.vT
        pool = list(range(self.s_st, 100, 2)) + list(range(4, 24, 2))
        A("s_memrealtime %s" % s(self.s_ord, 2))
        A("s_waitcnt lgkmcnt(0)")
        A("s_lshl_b32 %s, s2, 2" % s(self.s_t0))
        A("s_add_u32 %s, %s, %s" % (s(self.s_t0), s(self.s_t0), s(self.s_w)))
        A("s_lshl_b32 %s, %s, 7" % (s(self.s_t0), s(self.s_t0)))
        A("s_add_u32 %s, %s, 0x%x" % (s(self.s_t0), s(self.s_t0), STATS))
        A("s_mov_b64 exec, 1")
        for i in range(self.nst):
            A("s_sub_u32 %s, %s, %s" % (s(self.s_t1), s(pool[i]), s(pool[0])))
            A("v_mov_b32 %s, %s" % (v(T), s(self.s_t1)))
            A("buffer_store_dword %s, off, %s, %s offset:%d" % (v(T), s(self.sWS, 4), s(self.s_t0), 4 * i))
        A("v_mov_b32 %s, s100" % v(T))
        A("buffer_store_dword %s, off, %s, %s offset:120" % (v(T), s(self.sWS, 4), s(self.s_t0)))
        A("v_mov_b32 %s, %s" % (v(T), s(self.s_ord)))
        A("buffer_store_dword %s, off, %s, %s offset:124" % (v(T), s(self.sWS, 4), s(self.s_t0)))

    def build(self):
        A = self.A
        self.prologue()
        self.setup()
        self.pass1()
        A("s_cmp_eq_u32 %s, 0" % s(self.s_br))
        A("s_cbranch_scc0 L_B")
        snap = A.snapshot()
        n0 = self.nst
        for isA, sfx in ((True, "A"), (False, "B")):
            if not isA:
                A.label("L_B")
                A.restore(snap)
                self.nst = n0
            self.kpath(isA)
            self.qpass(sfx)
            self.qpath(isA, sfx)
            self.outproj(sfx)
        body = A.text() + "".join(self.slow)
        head = open("cdna_kernels/%s.s.ref" % NAME).read().split("; Override launch")[0]
        txt = head
        txt += "; Generated by gen/gen.py (hand-written generator): one persistent launch, 256 workgroups, one per CU.\n"
        txt += "; @launch grid=(256,1,1) block=(256,1,1) lds=%d\n" % LDS_BYTES
        txt += '.amdgcn_target "amdgcn-amd-amdhsa--gfx950"\n.text\n.globl %s\n.p2align 8\n.type %s,@function\n%s:\n' % (KNAME, KNAME, KNAME)
        txt += body
        txt += "L_end:\n    s_endpgm\nL_codeend:\n.set CODE_BYTES, L_codeend - %s - 64\n" % KNAME
        txt += """.section .rodata,"a"
.p2align 6
.amdhsa_kernel %s
  .amdhsa_next_free_vgpr 416
  .amdhsa_next_free_sgpr 102
  .amdhsa_accum_offset 256
  .amdhsa_group_segment_fixed_size 0
  .amdhsa_kernarg_size 80
  .amdhsa_user_sgpr_count 2
  .amdhsa_user_sgpr_kernarg_segment_ptr 1
  .amdhsa_system_sgpr_workgroup_id_x 1
.end_amdhsa_kernel
""" % KNAME
        return txt


if __name__ == "__main__":
    out = sys.argv[1] if len(sys.argv) > 1 else "cdna_kernels/%s.s" % NAME
    g = Gen(stamps=("stamps" in sys.argv))
    txt = g.build()
    open(out, "w").write(txt)
    print("wrote", out, len(txt), "bytes; nops", g.A.nops, "vT", g.vT, "s_st", g.s_st, "stamps", g.nst)
```

```python
import sys
sys.path.insert(0, "gen")
from asmlib import Asm, merge, rr

NAME = "concat_heads__linear_kernel_hedgehog__linear_attn_block__prompt"
KNAME = NAME + "_kernel"

SLOT = 36864
KBUF, VBUF = 40960, 61440
WQ_R = [110592, 131072, 81920, 0, 20480]
WO_R = [VBUF, WQ_R[0], WQ_R[1], WQ_R[2], WQ_R[3]]
PHIST = 151552
ONES = 155648
LDS_BYTES = 163840
PSTR = 1792
PART = 0
RED = 0x200000
OBUF = 0x300000
STATS = 0x900000
OOB = 0x40000000
LOG2E = 0x3fb8aa3b
EPS = 0x358637bd
NEPSC = 0xb5c1a2f1


class Regs:
    def __init__(self, kind, lo, hi):
        self.kind, self.next, self.hi = kind, lo, hi
        self.names = {}

    def alloc(self, name, n=1, align=1):
        self.next = (self.next + align - 1) // align * align
        r = self.next
        self.next += n
        assert self.next <= self.hi, "out of %s regs at %s" % (self.kind, name)
        self.names[name] = r
        return r


def v(i, n=1):
    return "v%d" % i if n == 1 else "v[%d:%d]" % (i, i + n - 1)


def a(i, n=1):
    return "a%d" % i if n == 1 else "a[%d:%d]" % (i, i + n - 1)


def s(i, n=1):
    return "s%d" % i if n == 1 else "s[%d:%d]" % (i, i + n - 1)


class Gen:
    def __init__(self, stamps=False, opt=None):
        self.A = Asm()
        self.stamps = stamps
        self.opt = dict(RD=4, r1_at=6, r2_at=13, orders=None, o_delay=0, pf=1, outflag="", touch=0)
        if opt:
            self.opt.update(opt)
        self.nst = 0
        self.slow = []
        self.alloc()

    def alloc(self):
        S = Regs("s", 24, 102)
        self.sX = S.alloc("X", 4, 4)
        self.sW = S.alloc("W", 4, 4)
        self.sWO = S.alloc("WO", 4, 4)
        self.sWS = S.alloc("WS", 4, 4)
        self.sOUT = S.alloc("OUT", 4, 4)
        self.sAUX = S.alloc("AUX", 4, 4)
        self.sDBG = S.alloc("DBG", 4, 4)
        for nm in ("br", "rb", "hg", "w", "slot", "xbase", "wbase", "m0b", "t0", "t1", "t2", "part", "red", "slice",
                   "ost", "old", "wob", "rot", "outb", "cnt"):
            setattr(self, "s_" + nm, S.alloc(nm))
        self.s_ord = S.alloc("ord", 2, 2)
        self.s_ordq = S.alloc("ordq", 2, 2)
        self.s_c = S.alloc("c", 2, 2)
        self.s_st = S.alloc("stamps", 0, 2)
        self.S = S
        V = Regs("v", 1, 256)
        self.vl = V.alloc("lane")
        self.vXa = V.alloc("Xa", 4)
        self.vWa = V.alloc("Wa", 5)
        self.vOa = V.alloc("Oa", 5)
        self.vOl = V.alloc("Ol", 5)
        self.vWr = V.alloc("Wr", 3)
        self.vXr = V.alloc("Xr", 4)
        self.vEx = V.alloc("Ex", 5)
        self.vHr0 = V.alloc("Hr0")
        self.vHr4 = V.alloc("Hr4")
        self.vPw = V.alloc("Pw")
        self.vTm = V.alloc("Tm")
        self.vT2 = V.alloc("T2")
        self.vVd = V.alloc("Vd", 8)
        self.vL16 = V.alloc("L16")
        self.vP0 = V.alloc("P0")
        self.vP1 = V.alloc("P1")
        self.vP2 = V.alloc("P2")
        self.vRl = V.alloc("Rl")
        self.vRs = V.alloc("Rs")
        self.vK = V.alloc("K", 3)
        self.vOm = V.alloc("Om")
        self.vOx = V.alloc("Ox", 2)
        self.vSo = V.alloc("So")
        self.vSo4 = V.alloc("So4")
        self.vCnt = V.alloc("Cnt")
        self.vSel = V.alloc("Sel", 4, 4)
        self.vEps = V.alloc("Eps", 4, 4)
        self.vPhi = V.alloc("Phi", 6, 4)
        self.vKV = V.alloc("KV", 10, 2)
        self.vF = V.alloc("F", 32, 4)
        self.vAcc = V.alloc("Acc", 80, 4)
        self.vT = V.alloc("T", 0, 4)
        self.V = V

    def stamp(self):
        if not self.stamps:
            return
        pool = list(range(self.s_st, 100, 2)) + list(range(4, 24, 2))
        r = pool[self.nst]
        self.nst += 1
        self.A("s_memtime %s" % s(r, 2))

    def emit(self, items):
        for it in items:
            if callable(it):
                it()
            elif isinstance(it, tuple):
                self.A(it[0], it[1])
            else:
                self.A(it)

    def ds(self, bases, off):
        return v(bases + off // 65536), off % 65536

    def prologue(self):
        A = self.A
        l = self.vl
        T = self.vT
        A("s_cmp_ge_u32 s2, 256")
        A("s_cbranch_scc1 L_end")
        A("s_load_dwordx16 s[4:19], s[0:1], 0")
        A("s_load_dwordx4 s[20:23], s[0:1], 64")
        if self.stamps:
            A("s_memrealtime s[100:101]")
        self.stamp()
        A("s_getpc_b64 %s" % s(self.sAUX, 2))
        A("s_mov_b32 %s, CODE_BYTES" % s(self.sAUX + 2))
        A("s_mov_b32 %s, 0x20000" % s(self.sAUX + 3))
        A("s_lshr_b32 %s, s2, 3" % s(self.s_slot))
        A("s_lshl_b32 %s, %s, 11" % (s(self.s_t0), s(self.s_slot)))
        A("v_lshlrev_b32 %s, 7, v0" % v(T))
        A("v_cmp_gt_u32 vcc, %d, v0" % (16 if self.opt["pf"] else 0))
        A("v_mov_b32 %s, 0x%x" % (v(T + 1), OOB))
        A("v_lshrrev_b32 %s, 6, v0" % v(T + 2))
        A("v_cndmask_b32 %s, %s, %s, vcc" % (v(T), v(T + 1), v(T)))
        A("v_and_b32 %s, 63, v0" % v(l))
        A("v_readfirstlane_b32 %s, %s" % (s(self.s_w), v(T + 2)))
        A("buffer_load_dword %s, %s, %s, %s offen" % (v(self.vCnt), v(T), s(self.sAUX, 4), s(self.s_t0)), "pf")
        A("s_bfe_u32 %s, s2, 0x10002" % s(self.s_br))
        A("s_bfe_u32 %s, s2, 0x10001" % s(self.s_t0))
        A("s_and_b32 %s, %s, 7" % (s(self.s_t1), s(self.s_slot)))
        A("s_lshl_b32 %s, %s, 3" % (s(self.s_t0), s(self.s_t0)))
        A("s_add_u32 %s, %s, %s" % (s(self.s_rb), s(self.s_t0), s(self.s_t1)))
        A("s_lshr_b32 %s, %s, 3" % (s(self.s_t2), s(self.s_slot)))
        A("s_and_b32 %s, s2, 1" % s(self.s_t0))
        A("s_lshl_b32 %s, %s, 2" % (s(self.s_t0), s(self.s_t0)))
        A("s_add_u32 %s, %s, %s" % (s(self.s_hg), s(self.s_t0), s(self.s_t2)))
        orders = self.opt["orders"] or [[(st + t) % 10 for t in range(10)] for st in (0, 2, 5, 7)]
        words = []
        for o in orders:
            assert sorted(o) == list(range(10))
            x = sum(c << (4 * t) for t, c in enumerate(o))
            words.append((x & 0xffffffff, x >> 32))
        A("s_add_u32 %s, %s, %s" % (s(self.s_t1), s(self.s_t1), s(self.s_t2)))
        A("s_and_b32 %s, %s, %d" % (s(self.s_t1), s(self.s_t1), len(orders) - 1))
        A("s_mov_b32 %s, 0x%x" % (s(self.s_ord), words[0][0]))
        A("s_mov_b32 %s, 0x%x" % (s(self.s_ord + 1), words[0][1]))
        for i in range(1, len(orders)):
            A("s_cmp_eq_u32 %s, %d" % (s(self.s_t1), i))
            A("s_cselect_b32 %s, 0x%x, %s" % (s(self.s_ord), words[i][0], s(self.s_ord)))
            A("s_cselect_b32 %s, 0x%x, %s" % (s(self.s_ord + 1), words[i][1], s(self.s_ord + 1)))
        A("v_lshrrev_b32 %s, 3, %s" % (v(T), v(l)))
        A("v_lshrrev_b32 %s, 4, %s" % (v(T + 1), v(l)))
        A("v_and_b32 %s, 7, %s" % (v(T + 2), v(l)))
        A("v_mul_u32_u24 %s, 1280, %s" % (v(T), v(T)))
        A("v_xor_b32 %s, %s, %s" % (v(T + 2), v(T + 2), v(T + 1)))
        A("v_lshl_add_u32 %s, %s, 4, %s" % (v(self.vXa), v(T + 2), v(T)))
        A("v_xor_b32 %s, 64, %s" % (v(T), v(self.vXa)))
        A("v_add_u32 %s, 9216, %s" % (v(self.vXa + 1), v(T)))
        A("v_add_u32 %s, 18432, %s" % (v(self.vXa + 2), v(self.vXa)))
        A("v_add_u32 %s, 27648, %s" % (v(self.vXa + 3), v(T)))
        for j in range(5):
            A("v_add_u32 %s, %d, %s" % (v(T), 64 * j, v(l)))
            A("v_mul_u32_u24 %s, 0xccd, %s" % (v(T + 1), v(T)))
            A("v_lshrrev_b32 %s, 15, %s" % (v(self.vOa + j), v(T + 1)))
            A("v_mul_u32_u24 %s, 10, %s" % (v(T + 1), v(self.vOa + j)))
            A("v_sub_u32 %s, %s, %s" % (v(T), v(T), v(T + 1)))
            A("v_lshlrev_b32 %s, 4, %s" % (v(T), v(T)))
            A("v_subrev_u32 %s, %d, %s" % (v(self.vOl + j), 1024 * (j % 4), v(T)))
            A("v_and_b32 %s, 12, %s" % (v(T), v(self.vOa + j)))
            A("v_lshrrev_b32 %s, 4, %s" % (v(T + 1), v(self.vOa + j)))
            A("v_and_b32 %s, 3, %s" % (v(T + 2), v(self.vOa + j)))
            A("v_lshl_add_u32 %s, %s, 1, %s" % (v(T), v(T), v(T + 2)))
            A("v_lshl_add_u32 %s, %s, 2, %s" % (v(T), v(T + 1), v(T)))
            A("v_mul_u32_u24 %s, 3840, %s" % (v(T), v(T)))
            A("v_add_u32 %s, %s, %s" % (v(self.vWa + j), v(T), v(self.vOl + j)))
        A("s_lshl_b32 %s, %s, 2" % (s(self.s_t0), s(self.s_rb)))
        A("s_add_u32 %s, %s, %s" % (s(self.s_t0), s(self.s_t0), s(self.s_w)))
        A("s_mul_i32 %s, %s, 40960" % (s(self.s_xbase), s(self.s_t0)))
        A("s_and_b32 %s, %s, 1" % (s(self.s_t0), s(self.s_w)))
        A("s_mul_i32 %s, %s, 122880" % (s(self.s_t0), s(self.s_t0)))
        A("s_mul_i32 %s, %s, 160" % (s(self.s_t1), s(self.s_hg)))
        A("s_add_u32 %s, %s, %s" % (s(self.s_cnt), s(self.s_t0), s(self.s_t1)))
        A("s_lshr_b32 %s, %s, 1" % (s(self.s_t0), s(self.s_w)))
        A("s_lshl_b32 %s, %s, 2" % (s(self.s_t1), s(self.s_t0)))
        A("s_lshr_b64 %s, %s, %s" % (s(self.s_ordq, 2), s(self.s_ord, 2), s(self.s_t1)))
        A("s_add_u32 %s, %s, 1" % (s(self.s_t0), s(self.s_t0)))
        A("s_mul_i32 %s, %s, 1280" % (s(self.s_t0), s(self.s_t0)))
        A("s_add_u32 %s, %s, %s" % (s(self.s_wbase), s(self.s_cnt), s(self.s_t0)))
        A("s_mul_i32 %s, %s, 9216" % (s(self.s_m0b), s(self.s_w)))
        A("s_mov_b32 %s, 2621440" % s(self.sX + 2))
        A("s_mov_b32 %s, 0x20000" % s(self.sX + 3))
        A("s_mov_b32 %s, 2457600" % s(self.sW + 2))
        A("s_mov_b32 %s, 0x20000" % s(self.sW + 3))
        A("s_cmp_eq_u32 %s, 0" % s(self.s_br))
        A("s_waitcnt lgkmcnt(0)")
        A("s_cselect_b32 %s, s4, s12" % s(self.sX))
        A("s_cselect_b32 %s, s5, s13" % s(self.sX + 1))
        A("s_cselect_b32 %s, s6, s14" % s(self.sW))
        A("s_cselect_b32 %s, s7, s15" % s(self.sW + 1))
        A("s_cselect_b32 %s, s10, s16" % s(self.sWO))
        A("s_cselect_b32 %s, s11, s17" % s(self.sWO + 1))
        self.emit(self.dma_chunk(0))
        self.emit(self.dma_chunk(1))
        self.stamp()

    def dma_chunk(self, t):
        base = (t % 3) * SLOT
        tag = "c%d" % t
        it = []
        w, sh = (self.s_ord, 4 * t) if t < 8 else (self.s_ord + 1, 4 * (t - 8))
        it.append("s_bfe_u32 %s, %s, 0x%x\n" % (s(self.s_t0), s(w), 0x40000 | sh) +
                  "s_lshl_b32 %s, %s, 7\n" % (s(self.s_t1), s(self.s_t0)) +
                  "s_add_u32 %s, %s, %s\n" % (s(self.s_t1), s(self.s_t1), s(self.s_xbase)) +
                  "s_add_u32 m0, %s, %d\n" % (s(self.s_m0b), base + 4096) +
                  "s_mul_i32 %s, %s, 245760\n" % (s(self.s_t0), s(self.s_t0)) +
                  "s_add_u32 %s, %s, %s\n" % (s(self.s_t0), s(self.s_t0), s(self.s_wbase)))
        for j in range(4):
            it.append(("buffer_load_dwordx4 %s, %s, %s offen offset:%d lds" % (v(self.vWa + j), s(self.sW, 4), s(self.s_t0), 1024 * j), tag))
        it.append("s_add_u32 m0, %s, %d" % (s(self.s_m0b), base + 8192))
        it.append(("buffer_load_dwordx4 %s, %s, %s offen lds" % (v(self.vWa + 4), s(self.sW, 4), s(self.s_t0)), tag))
        it.append("s_add_u32 m0, %s, %d" % (s(self.s_m0b), base))
        for j in range(4):
            it.append(("buffer_load_dwordx4 %s, %s, %s offen offset:%d lds" % (v(self.vXa + j), s(self.sX, 4), s(self.s_t1), 1024 * j), tag))
        return it

    def dma_block(self, pre, va, srd, ldsbase, tag):
        it = [pre + "s_add_u32 m0, %s, %d\n" % (s(self.s_m0b), ldsbase)]
        for j in range(4):
            it.append(("buffer_load_dwordx4 %s, %s, %s offen offset:%d lds" % (v(va + j), s(srd, 4), s(self.s_t0), 1024 * j), tag))
        it.append("s_add_u32 m0, %s, %d" % (s(self.s_m0b), ldsbase + 4096))
        it.append(("buffer_load_dwordx4 %s, %s, %s offen lds" % (v(va + 4), s(srd, 4), s(self.s_t0)), tag))
        return it

    def dma_wq(self, r):
        w, sh = (self.s_ordq, 8 * r) if r < 4 else (self.s_ordq + 1, 0)
        pre = ("s_bfe_u32 %s, %s, 0x%x\n" % (s(self.s_t0), s(w), 0x40000 | sh) +
               "s_mul_i32 %s, %s, 245760\n" % (s(self.s_t0), s(self.s_t0)) +
               "s_add_u32 %s, %s, %s\n" % (s(self.s_t0), s(self.s_t0), s(self.s_wbase)))
        return self.dma_block(pre, self.vWa, self.sW, WQ_R[r], "wq")

    def dma_wo(self, r):
        if r < 4:
            pre = ("s_add_u32 %s, %s, %d\n" % (s(self.s_t0), s(self.s_rot), 4 * r) +
                   "s_add_u32 %s, %s, %s\n" % (s(self.s_t0), s(self.s_t0), s(self.s_w)) +
                   "s_and_b32 %s, %s, 15\n" % (s(self.s_t0), s(self.s_t0)) +
                   "s_mul_i32 %s, %s, 51200\n" % (s(self.s_t0), s(self.s_t0)))
            va = self.vOa
        else:
            pre = ("s_lshr_b32 %s, %s, 2\n" % (s(self.s_t0), s(self.s_rot)) +
                   "s_add_u32 %s, %s, %s\n" % (s(self.s_t0), s(self.s_t0), s(self.s_w)) +
                   "s_and_b32 %s, %s, 3\n" % (s(self.s_t0), s(self.s_t0)) +
                   "s_mul_i32 %s, %s, 204800\n" % (s(self.s_t0), s(self.s_t0)))
            va = self.vOl
        pre += "s_add_u32 %s, %s, %s\n" % (s(self.s_t0), s(self.s_t0), s(self.s_wob))
        return self.dma_block(pre, va, self.sWO, WO_R[r], "wo")

    def setup(self):
        A = self.A
        l = self.vl
        T = self.vT
        g, i16, hf, s32, oob, r_, c_ = T + 8, T + 9, T + 10, T + 11, T + 12, T + 13, T + 14
        A("s_mov_b32 %s, 819200" % s(self.sWO + 2))
        A("s_mov_b32 %s, 0x20000" % s(self.sWO + 3))
        A("s_mov_b32 %s, s22" % s(self.sWS))
        A("s_mov_b32 %s, s23" % s(self.sWS + 1))
        A("s_mov_b32 %s, 0x10000000" % s(self.sWS + 2))
        A("s_mov_b32 %s, 0x20000" % s(self.sWS + 3))
        A("s_mov_b32 %s, s18" % s(self.sOUT))
        A("s_mov_b32 %s, s19" % s(self.sOUT + 1))
        A("s_mov_b32 %s, 5242880" % s(self.sOUT + 2))
        A("s_mov_b32 %s, 0x20000" % s(self.sOUT + 3))
        A("s_mov_b32 %s, s20" % s(self.sDBG))
        A("s_mov_b32 %s, s21" % s(self.sDBG + 1))
        A("s_mov_b32 %s, 256" % s(self.sDBG + 2))
        A("s_mov_b32 %s, 0x20000" % s(self.sDBG + 3))
        A("s_mov_b32 %s, s8" % s(self.sAUX))
        A("s_mov_b32 %s, s9" % s(self.sAUX + 1))
        A("s_mov_b32 %s, 25600" % s(self.sAUX + 2))
        A("s_mov_b32 %s, 0x%x" % (s(self.s_c), LOG2E))
        A("s_mov_b32 %s, 0x%x" % (s(self.s_c + 1), LOG2E))
        A("v_lshlrev_b32 %s, 4, %s" % (v(self.vL16), v(l)))
        A("s_lshl_b32 %s, %s, 2" % (s(self.s_t2), s(self.s_hg)))
        A("s_add_u32 %s, %s, %s" % (s(self.s_t2), s(self.s_t2), s(self.s_w)))
        A("s_mul_i32 %s, %s, 800" % (s(self.s_t0), s(self.s_t2)))
        A("s_lshl_b32 %s, %s, 10" % (s(self.s_t1), s(self.s_w)))
        A("s_add_u32 m0, %s, %d" % (s(self.s_t1), PHIST))
        A("s_nop 0")
        A("buffer_load_dwordx4 %s, %s, %s offen lds" % (v(self.vL16), s(self.sAUX, 4), s(self.s_t0)), "phi")
        A("s_lshl_b32 %s, %s, 5" % (s(self.s_t0), s(self.s_br)))
        A("s_add_u32 %s, %s, %s" % (s(self.s_t0), s(self.s_t0), s(self.s_t2)))
        A("s_mul_i32 %s, %s, %d" % (s(self.s_part), s(self.s_t0), 16 * PSTR))
        A("s_mul_i32 %s, %s, %d" % (s(self.s_red), s(self.s_t0), PSTR))
        A("s_add_u32 %s, %s, 0x%x" % (s(self.s_red), s(self.s_red), RED))
        A("s_lshl_b32 %s, %s, 4" % (s(self.s_t0), s(self.s_br)))
        A("s_add_u32 %s, %s, %s" % (s(self.s_t1), s(self.s_t0), s(self.s_rb)))
        A("s_lshl_b32 %s, %s, 5" % (s(self.s_t1), s(self.s_t1)))
        A("s_add_u32 %s, %s, %s" % (s(self.s_t1), s(self.s_t1), s(self.s_t2)))
        A("s_mul_i32 %s, %s, 5120" % (s(self.s_ost), s(self.s_t1)))
        A("s_add_u32 %s, %s, 0x%x" % (s(self.s_ost), s(self.s_ost), OBUF))
        A("s_and_b32 %s, s2, 3" % s(self.s_t1))
        A("s_lshl_b32 %s, %s, 2" % (s(self.s_t1), s(self.s_t1)))
        A("s_and_b32 %s, %s, 3" % (s(self.s_t2), s(self.s_slot)))
        A("s_add_u32 %s, %s, %s" % (s(self.s_t1), s(self.s_t1), s(self.s_t2)))
        A("s_add_u32 %s, %s, %s" % (s(self.s_t0), s(self.s_t0), s(self.s_t1)))
        A("s_mul_i32 %s, %s, 163840" % (s(self.s_old), s(self.s_t0)))
        A("s_add_u32 %s, %s, 0x%x" % (s(self.s_old), s(self.s_old), OBUF))
        A("s_mul_i32 %s, %s, 327680" % (s(self.s_outb), s(self.s_t1)))
        A("s_lshr_b32 %s, %s, 2" % (s(self.s_t0), s(self.s_slot)))
        A("s_mul_i32 %s, %s, 160" % (s(self.s_wob), s(self.s_t0)))
        A("s_add_u32 %s, %s, %s" % (s(self.s_outb), s(self.s_outb), s(self.s_wob)))
        A("s_mul_i32 %s, %s, 1280" % (s(self.s_t1), s(self.s_br)))
        A("s_add_u32 %s, %s, %s" % (s(self.s_outb), s(self.s_outb), s(self.s_t1)))
        A("s_lshl_b32 %s, %s, 1" % (s(self.s_t2), s(self.s_t2)))
        A("s_add_u32 %s, %s, %s" % (s(self.s_t0), s(self.s_t0), s(self.s_t2)))
        A("s_lshl_b32 %s, %s, 1" % (s(self.s_t0), s(self.s_t0)))
        A("s_and_b32 %s, %s, 15" % (s(self.s_rot), s(self.s_t0)))
        A("s_lshl_b32 %s, %s, 2" % (s(self.s_t0), s(self.s_w)))
        A("s_sub_u32 %s, %s, %s" % (s(self.s_t0), s(self.s_rb), s(self.s_t0)))
        A("s_and_b32 %s, %s, 15" % (s(self.s_slice), s(self.s_t0)))
        A("v_lshrrev_b32 %s, 4, %s" % (v(g), v(l)))
        A("v_and_b32 %s, 15, %s" % (v(i16), v(l)))
        A("v_lshrrev_b32 %s, 5, %s" % (v(hf), v(l)))
        A("v_and_b32 %s, 31, %s" % (v(s32), v(l)))
        A("v_mov_b32 %s, 0x%x" % (v(oob), OOB))
        A("v_bfe_u32 %s, %s, 2, 2" % (v(r_), v(l)))
        A("v_and_b32 %s, 3, %s" % (v(c_), v(l)))
        dd = T + 15
        A("v_lshrrev_b32 %s, 3, %s" % (v(T), v(s32)))
        A("v_lshl_add_u32 %s, %s, 2, %s" % (v(T), v(T), v(c_)))
        A("v_bfe_u32 %s, %s, 2, 1" % (v(T + 1), v(l)))
        A("v_lshl_add_u32 %s, %s, 3, %s" % (v(T + 2), v(T + 1), v(T)))
        A("v_add_u32 %s, 8, %s" % (v(T + 3), v(T)))
        A("v_min_u32 %s, 20, %s" % (v(T + 3), v(T + 3)))
        A("v_cmp_gt_u32 vcc, 8, %s" % v(T))
        A("v_mul_u32_u24 %s, 10, %s" % (v(T + 4), v(T + 1)))
        A("v_min_u32 %s, 9, %s" % (v(T + 5), v(T)))
        A("v_cndmask_b32 %s, %s, %s, vcc" % (v(dd), v(T + 3), v(T + 2)))
        ff = T + 16
        A("v_add_u32 %s, %s, %s" % (v(ff), v(T + 4), v(T + 5)))
        A("s_cmp_eq_u32 %s, 0" % s(self.s_br))
        A("s_cbranch_scc0 L_setB")
        A("v_mov_b32 %s, %s" % (v(self.vP0), v(self.vL16)))
        A("v_mul_u32_u24 %s, 80, %s" % (v(T), v(g)))
        A("v_lshl_add_u32 %s, %s, 4, %s" % (v(T), v(i16), v(T)))
        A("v_cmp_gt_u32 vcc, 5, %s" % v(i16))
        A("v_add_u32 %s, 1024, %s" % (v(T), v(T)))
        A("v_add_u32 %s, 1344, %s" % (v(T + 1), v(self.vL16)))
        A("v_cndmask_b32 %s, %s, %s, vcc" % (v(self.vP1), v(oob), v(T)))
        A("v_cmp_gt_u32 vcc, 16, %s" % v(dd))
        A("v_mov_b32 %s, 80" % v(T + 2))
        A("v_mov_b32 %s, 768" % v(T + 3))
        A("v_mov_b32 %s, 256" % v(T + 4))
        A("v_cndmask_b32 %s, %s, %s, vcc" % (v(T + 2), v(T + 2), v(T + 4)))
        A("v_cndmask_b32 %s, %s, 0, vcc" % (v(T + 3), v(T + 3)))
        A("v_lshl_add_u32 %s, %s, 4, %s" % (v(T + 3), v(dd), v(T + 3)))
        A("v_mad_u32_u24 %s, %s, %s, %s" % (v(self.vK), v(hf), v(T + 2), v(T + 3)))
        A("v_lshl_add_u32 %s, %s, 1, %s" % (v(self.vK + 1), v(T + 2), v(self.vK)))
        A("v_lshlrev_b32 %s, 3, %s" % (v(T + 2), v(hf)))
        A("v_lshl_add_u32 %s, %s, 4, %s" % (v(T + 2), v(dd), v(T + 2)))
        A("v_add_u32 %s, 1344, %s" % (v(self.vK + 2), v(T + 2)))
        A("v_and_b32 %s, 1, %s" % (v(T + 2), v(l)))
        A("v_mul_u32_u24 %s, 1280, %s" % (v(self.vT2), v(T + 2)))
        A("v_mov_b32 %s, 0" % v(self.vEps))
        A("s_mov_b32 %s, 104" % s(self.s_t0))
        A("s_mov_b32 %s, 7" % s(self.s_t1))
        A("s_branch L_setJ")
        A.label("L_setB")
        A("v_mul_u32_u24 %s, 336, %s" % (v(T + 2), v(hf)))
        A("v_cmp_gt_u32 vcc, 21, %s" % v(s32))
        A("v_lshl_add_u32 %s, %s, 4, %s" % (v(T), v(s32), v(T + 2)))
        A("v_mov_b32 %s, %s" % (v(self.vP1), v(oob)))
        A("v_cndmask_b32 %s, %s, %s, vcc" % (v(self.vP0), v(oob), v(T)))
        A("v_add_u32 %s, 672, %s" % (v(T + 1), v(self.vL16)))
        A("v_lshl_add_u32 %s, %s, 4, %s" % (v(self.vK), v(dd), v(T + 2)))
        A("v_cmp_gt_u32 vcc, 32, %s" % v(l))
        A("v_lshlrev_b32 %s, 4, %s" % (v(T + 2), v(dd)))
        A("v_add_u32 %s, 672, %s" % (v(T + 2), v(T + 2)))
        A("v_mov_b32 %s, %s" % (v(self.vK + 1), v(oob)))
        A("v_cndmask_b32 %s, %s, %s, vcc" % (v(self.vK + 2), v(oob), v(T + 2)))
        A("v_mov_b32 %s, 0" % v(self.vT2))
        A("v_mov_b32 %s, 0x%x" % (v(self.vEps), EPS))
        A("s_mov_b32 %s, 62" % s(self.s_t0))
        A("s_mov_b32 %s, 4" % s(self.s_t1))
        A.label("L_setJ")
        A("s_nop 1")
        A("v_cmp_gt_u32 vcc, 21, %s" % v(l))
        A("v_mov_b32 %s, %s" % (v(self.vEps + 1), v(self.vEps)))
        A("v_mov_b32 %s, %s" % (v(self.vEps + 2), v(self.vEps)))
        A("v_cndmask_b32 %s, %s, %s, vcc" % (v(self.vP2), v(oob), v(T + 1)))
        A("v_mov_b32 %s, %s" % (v(self.vEps + 3), v(self.vEps)))
        A("s_lshl_b32 %s, %s, 4" % (s(self.s_t2), s(self.s_slice)))
        A("v_add_u32 %s, %s, %s" % (v(T), s(self.s_t2), v(i16)))
        A("v_min_u32 %s, %s, %s" % (v(T), s(self.s_t0), v(T)))
        A("v_lshlrev_b32 %s, 4, %s" % (v(T), v(T)))
        A("v_mul_u32_u24 %s, %d, %s" % (v(T + 1), PSTR, v(g)))
        A("v_add_u32 %s, %s, %s" % (v(self.vRl), v(T), v(T + 1)))
        A("s_cmp_lt_u32 %s, %s" % (s(self.s_slice), s(self.s_t1)))
        A("s_cselect_b32 %s, 16, 0" % s(self.s_t2))
        A("s_cselect_b32 %s, 1, 0" % s(self.s_slice))
        A("v_cmp_gt_u32 vcc, %s, %s" % (s(self.s_t2), v(l)))
        A("v_mov_b32 %s, -1" % v(T + 4))
        A("v_mov_b32 %s, -1" % v(T + 5))
        A("v_cndmask_b32 %s, %s, %s, vcc" % (v(self.vRs), v(oob), v(T)))
        A("v_mov_b32 %s, -1" % v(T + 6))
        A("v_mov_b32 %s, -1" % v(T + 7))
        A("s_mul_i32 %s, %s, %d" % (s(self.s_t0), s(self.s_rb), PSTR))
        A("s_add_u32 %s, %s, %s" % (s(self.s_t0), s(self.s_t0), s(self.s_part)))
        A("s_add_u32 %s, %s, 4096" % (s(self.s_t1), s(self.s_ost)))
        for r in (self.vP0, self.vP1, self.vP2):
            A("buffer_store_dwordx4 %s, %s, %s, %s offen sc1" % (v(T + 4, 4), v(r), s(self.sWS, 4), s(self.s_t0)), "clr")
        A("buffer_store_dwordx4 %s, %s, %s, %s offen sc1" % (v(T + 4, 4), v(self.vRs), s(self.sWS, 4), s(self.s_red)), "clr")
        for u in range(4):
            A("buffer_store_dwordx4 %s, %s, %s, %s offen offset:%d sc1" % (v(T + 4, 4), v(self.vL16), s(self.sWS, 4), s(self.s_ost), 1024 * u), "clr")
        A("buffer_store_dwordx4 %s, %s, %s, %s offen sc1" % (v(T + 4, 4), v(self.vL16), s(self.sWS, 4), s(self.s_t1)), "clr")
        A("v_lshrrev_b32 %s, 2, %s" % (v(T), v(l)))
        A("v_mul_u32_u24 %s, 160, %s" % (v(T), v(T)))
        A("v_lshl_add_u32 %s, %s, 3, %s" % (v(self.vWr), v(c_), v(T)))
        A("v_add_u32 %s, 0x10000, %s" % (v(self.vWr + 1), v(self.vWr)))
        A("v_add_u32 %s, 0x20000, %s" % (v(self.vWr + 2), v(self.vWr)))
        A("v_lshrrev_b32 %s, 1, %s" % (v(T), v(i16)))
        A("v_xor_b32 %s, %s, %s" % (v(T), v(T), v(g)))
        A("v_lshlrev_b32 %s, 4, %s" % (v(T), v(T)))
        A("v_lshl_add_u32 %s, %s, 7, %s" % (v(T), v(i16), v(T)))
        A("v_add_u32 %s, %s, %s" % (v(self.vXr), s(self.s_m0b), v(T)))
        A("v_add_u32 %s, 0x10000, %s" % (v(self.vXr + 1), v(self.vXr)))
        A("v_xor_b32 %s, 64, %s" % (v(self.vXr + 2), v(self.vXr)))
        A("v_add_u32 %s, 0x10000, %s" % (v(self.vXr + 3), v(self.vXr + 2)))
        A("s_mul_i32 %s, %s, 1280" % (s(self.s_t0), s(self.s_w)))
        A("v_mul_u32_u24 %s, 40, %s" % (v(T), v(i16)))
        A("v_add_u32 %s, %s, %s" % (v(T), s(self.s_t0), v(T)))
        for j in range(5):
            A("v_add_u32 %s, %d, %s" % (v(T + 1), 4 * j, v(g)))
            A("v_mul_u32_u24 %s, 52, %s" % (v(T + 2), v(T + 1)))
            A("v_lshrrev_b32 %s, 8, %s" % (v(T + 2), v(T + 2)))
            A("v_mul_u32_u24 %s, 5080, %s" % (v(T + 2), v(T + 2)))
            A("v_lshl_add_u32 %s, %s, 3, %s" % (v(T + 2), v(T + 1), v(T + 2)))
            A("v_add_u32 %s, %s, %s" % (v(self.vEx + j), v(T + 2), v(T)))
        A("s_mul_i32 %s, %s, 5120" % (s(self.s_t0), s(self.s_w)))
        A("v_mul_u32_u24 %s, 40, %s" % (v(T), v(s32)))
        A("v_add_u32 %s, %s, %s" % (v(T), s(self.s_t0), v(T)))
        A("v_lshl_add_u32 %s, %s, 4, %s" % (v(self.vHr0), v(hf), v(T)))
        A("v_add_u32 %s, 32, %s" % (v(self.vHr4), v(T)))
        A("v_mul_u32_u24 %s, 40, %s" % (v(T), v(l)))
        A("v_add_u32 %s, %s, %s" % (v(self.vPw), s(self.s_t0), v(T)))
        A("v_bfe_u32 %s, %s, 2, 3" % (v(T), v(l)))
        A("v_lshlrev_b32 %s, 1, %s" % (v(T + 1), v(hf)))
        A("v_lshl_add_u32 %s, %s, 2, %s" % (v(T), v(T), v(T + 1)))
        A("v_mul_u32_u24 %s, 40, %s" % (v(T), v(T)))
        A("v_add_u32 %s, %s, %s" % (v(T), s(self.s_t0), v(T)))
        A("v_lshl_add_u32 %s, %s, 3, %s" % (v(self.vTm), v(c_), v(T)))
        A("v_add3_u32 %s, %s, %s, 32" % (v(self.vT2), v(self.vT2), v(T)))
        A("v_cmp_eq_u32 vcc, 0, %s" % v(c_))
        A("v_mov_b32 %s, %d" % (v(T + 1), ONES))
        for u in range(4):
            for aa in range(2):
                A("v_add_u32 %s, %d, %s" % (v(T + 2), VBUF + 32 + u * 1280 + 40 * aa, v(T)))
                A("v_cndmask_b32 %s, %s, %s, vcc" % (v(self.vVd + 2 * u + aa), v(T + 1), v(T + 2)))
        A("v_mov_b32 %s, 0x3f803f80" % v(T + 2))
        A("v_mov_b32 %s, 0x3f803f80" % v(T + 3))
        A("ds_write_b64 %s, %s" % (v(T + 1), v(T + 2, 2)))
        A("v_mov_b32 %s, 0x3f80" % v(T + 2))
        A("v_and_b32 %s, 1, %s" % (v(T + 3), v(l)))
        A("v_lshlrev_b32 %s, 4, %s" % (v(T + 3), v(T + 3)))
        A("v_lshlrev_b32 %s, %s, %s" % (v(T + 2), v(T + 3), v(T + 2)))
        A("v_lshrrev_b32 %s, 1, %s" % (v(T + 3), v(i16)))
        for q in range(4):
            A("v_cmp_eq_u32 vcc, %d, %s" % (q, v(T + 3)))
            A("v_cndmask_b32 %s, 0, %s, vcc" % (v(self.vSel + q), v(T + 2)))
        for j in range(5):
            p = self.vOa + j
            A("v_bfe_u32 %s, %s, 2, 2" % (v(T), v(p)))
            A("v_lshrrev_b32 %s, 4, %s" % (v(T + 1), v(p)))
            A("v_and_b32 %s, 3, %s" % (v(T + 2), v(p)))
            A("v_lshl_add_u32 %s, %s, 1, %s" % (v(T + 3), v(T), v(T + 1)))
            A("v_mad_u32_u24 %s, %s, 20, %s" % (v(T + 3), v(T + 3), v(T + 2)))
            A("v_add_u32 %s, 16, %s" % (v(T + 3), v(T + 3)))
            A("v_lshl_add_u32 %s, %s, 2, %s" % (v(T + 2), v(T + 1), v(T + 2)))
            A("v_lshl_add_u32 %s, %s, 3, %s" % (v(T + 2), v(T), v(T + 2)))
            A("v_lshrrev_b32 %s, 1, %s" % (v(T), v(T)))
            A("v_lshl_add_u32 %s, %s, 2, %s" % (v(T + 2), v(T), v(T + 2)))
            A("v_mul_u32_u24 %s, 1280, %s" % (v(T + 2), v(T + 2)))
            A("v_mul_u32_u24 %s, 1280, %s" % (v(T + 3), v(T + 3)))
            A("v_add_u32 %s, %s, %s" % (v(p), v(T + 2), v(self.vOl + j)))
            A("v_add_u32 %s, %s, %s" % (v(self.vOl + j), v(T + 3), v(self.vOl + j)))
        A("s_lshr_b32 %s, %s, 1" % (s(self.s_t0), s(self.s_w)))
        A("s_and_b32 %s, %s, 1" % (s(self.s_t1), s(self.s_w)))
        A("s_lshl_b32 %s, %s, 10" % (s(self.s_t2), s(self.s_t0)))
        A("s_lshl_b32 %s, %s, 8" % (s(self.s_t1), s(self.s_t1)))
        A("s_add_u32 %s, %s, %s" % (s(self.s_t2), s(self.s_t2), s(self.s_t1)))
        A("v_and_b32 %s, 1, %s" % (v(T + 1), v(g)))
        A("v_mul_u32_u24 %s, 5120, %s" % (v(T), v(hf)))
        A("v_lshl_add_u32 %s, %s, 9, %s" % (v(T), v(T + 1), v(T)))
        A("v_lshl_add_u32 %s, %s, 4, %s" % (v(T), v(i16), v(T)))
        A("v_add_u32 %s, %s, %s" % (v(self.vOm), s(self.s_t2), v(T)))
        A("s_lshl_b32 %s, %s, 8" % (s(self.s_t2), s(self.s_w)))
        A("s_add_u32 %s, %s, 4096" % (s(self.s_t2), s(self.s_t2)))
        A("v_mul_u32_u24 %s, 10240, %s" % (v(T), v(g)))
        A("v_lshl_add_u32 %s, %s, 4, %s" % (v(T), v(i16), v(T)))
        A("v_add_u32 %s, %s, %s" % (v(self.vOx), s(self.s_t2), v(T)))
        A("v_add_u32 %s, 5120, %s" % (v(self.vOx + 1), v(self.vOx)))
        A("s_mul_i32 %s, %s, 40960" % (s(self.s_t2), s(self.s_w)))
        A("s_add_u32 %s, %s, %s" % (s(self.s_outb), s(self.s_outb), s(self.s_t2)))
        A("v_mul_u32_u24 %s, 2560, %s" % (v(T), v(i16)))
        A("v_lshl_add_u32 %s, %s, 4, %s" % (v(T), v(hf), v(T)))
        A("v_lshl_add_u32 %s, %s, 5, %s" % (v(self.vSo), v(T + 1), v(T)))
        A("v_mul_u32_u24 %s, 163840, %s" % (v(T + 1), v(T + 1)))
        A("v_add3_u32 %s, %s, %s, 64" % (v(T), v(T), v(T + 1)))
        A("v_add_u32 %s, 64, %s" % (v(self.vSo4), v(T)))
        if self.opt["touch"]:
            A("buffer_load_dword %s, off, %s, %s" % (v(T + 40), s(self.sOUT, 4), s(self.s_outb)), "touch")
            A("buffer_load_dword %s, off, %s, %s" % (v(T + 41), s(self.sWO, 4), s(self.s_wob)), "touch")
        self.vPg = T + 17
        A("s_lshl_b32 %s, %s, 10" % (s(self.s_t0), s(self.s_w)))
        A("s_add_u32 %s, %s, %d" % (s(self.s_t0), s(self.s_t0), PHIST))
        A("v_lshlrev_b32 %s, 1, %s" % (v(T), v(ff)))
        A("v_add_u32 %s, %s, %s" % (v(self.vPg + 1), s(self.s_t0), v(T)))
        A("v_mul_u32_u24 %s, 320, %s" % (v(T), v(hf)))
        A("v_add_u32 %s, %s, %s" % (v(self.vPg), v(self.vPg + 1), v(T)))
        self.vHfKeep = hf

    def phi_frags(self):
        T = self.vT + 20
        it = [lambda: self.A.wait_tag("phi")]
        for j in range(8):
            it.append("ds_read_u16 %s, %s offset:%d" % (v(T + j), v(self.vPg), 40 * j))
        for j in range(4):
            it.append("ds_read_u16 %s, %s offset:%d" % (v(T + 8 + j), v(self.vPg + 1), 640 + 40 * j))
        it.append("v_cmp_eq_u32 vcc, 0, %s" % v(self.vHfKeep))
        for q in range(6):
            it.append("v_lshl_or_b32 %s, %s, 16, %s" % (v(self.vPhi + q), v(T + 2 * q + 1), v(T + 2 * q)))
        for q in (4, 5):
            it.append("v_cndmask_b32 %s, 0, %s, vcc" % (v(self.vPhi + q), v(self.vPhi + q)))
        return it

    def frag_reads(self, f, off):
        r = self.vF + 4 * (f % 8)
        out = []
        for aa in range(2):
            reg, imm = self.ds(self.vWr, off + 2560 * aa)
            out.append("ds_read_b64_tr_b16 %s, %s offset:%d" % (v(r + 2 * aa, 2), reg, imm))
        return out

    def pass1(self):
        A = self.A
        RD = self.opt["RD"]

        def off(f):
            t, ks, j = f // 20, (f % 20) // 10, f % 10
            return (t % 3) * SLOT + (2 * (j // 5) + ks) * 9216 + 4096 + 32 * (j % 5)

        def mfmas(f):
            t, ks, j = f // 20, (f % 20) // 10, f % 10
            o = []
            for rt in range(2):
                acc = self.vAcc + 8 * j + 4 * rt
                c = v(acc, 4) if f >= 10 else (v(self.vEps, 4) if j < 5 else "0")
                o.append("v_mfma_f32_16x16x32_bf16 %s, %s, %s, %s" % (v(acc, 4), v(self.vF + 4 * (f % 8), 4), a(16 * t + 8 * ks + 4 * rt, 4), c))
            return o

        def boundary(t):
            o = [lambda: A.wait_tag("c%d" % t, lg0=True)]
            if t == 2:
                o.append(lambda: A.wait_tag("clr"))
            for ks in range(2):
                for rt in range(2):
                    reg, imm = self.ds(self.vXr + 2 * ks, (t % 3) * SLOT + 2048 * rt)
                    o.append("ds_read_b128 %s, %s offset:%d" % (a(16 * t + 8 * ks + 4 * rt, 4), reg, imm))
            o.append("s_barrier")
            return o

        self.emit(boundary(0))
        self.stamp()
        for t in range(10):
            main = []
            lo = 20 * t - RD
            for f in range(lo, lo + 20):
                main += self.frag_reads(f + RD, off(f + RD))
                if f >= 0:
                    main += mfmas(f)
            if t < 8:
                side = self.dma_chunk(t + 2)
            else:
                side = []
                if t == 8:
                    side.append("s_mul_i32 %s, %s, 5120\ns_mov_b32 %s, %s" % (s(self.s_m0b), s(self.s_w), s(self.s_wbase), s(self.s_cnt)))
                side += self.dma_wq(t - 8)
            if t == 1:
                side = side + self.phi_frags()
            if t == 2:
                side = [self.count_in] + side
            self.emit(merge(main, side, 2, len(main) - 6))
            if t < 9:
                self.emit(boundary(t + 1))
        for f in range(200 - RD, 200):
            self.emit(mfmas(f))
        self.stamp()

    def count_in(self):
        A = self.A
        A("s_cmp_eq_u32 %s, 0" % s(self.s_w))
        A("s_cbranch_scc0 L_nocnt")
        A.begin_cond("cnt")
        A("s_lshl_b32 %s, %s, 7" % (s(self.s_t2), s(self.s_br)))
        A("s_mov_b64 exec, 1")
        A("v_mov_b32 %s, 1" % v(self.vCnt))
        A("buffer_atomic_add %s, off, %s, %s sc1" % (v(self.vCnt), s(self.sDBG, 4), s(self.s_t2)))
        A("s_mov_b64 exec, -1")
        A.end_cond()
        A.label("L_nocnt")

    def elu(self, acc, n):
        T = self.vT
        it = []
        for b in range(0, n, 8):
            for k in range(0, 8, 2):
                it.append("v_pk_fma_f32 %s, %s, %s, %s op_sel_hi:[1,1,0]" % (v(T + k, 2), v(acc + b + k, 2), s(self.s_c, 2), v(self.vPhi, 2)))
            for k in range(8):
                it.append("v_exp_f32_e64 %s, %s clamp" % (v(T + k), v(T + k)))
                it.append("v_max_f32_e64 %s, %s, %s" % (v(acc + b + k), v(acc + b + k), v(self.vEps)))
            for k in range(0, 8, 2):
                it.append("v_pk_add_f32 %s, %s, %s" % (v(acc + b + k, 2), v(acc + b + k, 2), v(T + k, 2)))
        return it

    def exch_write(self, acc, buf):
        it = []
        for j in range(5):
            for rt in range(2):
                r = acc + 8 * j + 4 * rt
                it.append("v_cvt_pk_bf16_f32 %s, %s, %s" % (v(r), v(r), v(r + 1)))
                it.append("v_cvt_pk_bf16_f32 %s, %s, %s" % (v(r + 1), v(r + 2), v(r + 3)))
                it.append("ds_write_b64 %s, %s offset:%d" % (v(self.vEx + j), v(r, 2), buf + 640 * rt))
        return it

    def head_reads(self, dst, u):
        return ["ds_read_b64 %s, %s offset:%d" % (v(dst, 2), v(self.vHr0), KBUF + 1280 * u),
                "ds_read_b64 %s, %s offset:%d" % (v(dst + 2, 2), v(self.vHr0), KBUF + 1280 * u + 8),
                "ds_read_b64 %s, %s offset:%d" % (v(dst + 4, 2), v(self.vHr4), KBUF + 1280 * u)]

    def feat_mfma(self, D, src):
        return ["v_mfma_f32_32x32x16_bf16 %s, %s, %s, 0" % (v(D, 16), v(self.vPhi, 4), v(src, 4)),
                "v_mfma_f32_32x32x8_bf16 %s, %s, %s, %s" % (v(D, 16), v(self.vPhi + 4, 2), v(src + 4, 2), v(D, 16))]

    def softmax(self, P, E, out):
        m, n = P + 10, P + 12
        it = []
        it.append("v_max3_f32 %s, %s, %s, %s" % (v(m), v(P), v(P + 1), v(P + 2)))
        it.append("v_max3_f32 %s, -%s, -%s, -%s" % (v(n), v(P), v(P + 1), v(P + 2)))
        for k in (3, 5, 7):
            it.append("v_max3_f32 %s, %s, %s, %s" % (v(m), v(m), v(P + k), v(P + k + 1)))
            it.append("v_max3_f32 %s, %s, -%s, -%s" % (v(n), v(n), v(P + k), v(P + k + 1)))
        it.append("v_max_f32_e64 %s, %s, %s" % (v(m), v(m), v(P + 9)))
        it.append("v_max_f32_e64 %s, %s, -%s" % (v(n), v(n), v(P + 9)))
        it.append("v_permlane32_swap_b32 %s, %s" % (v(m), v(n)))
        it.append("v_max_f32 %s, %s, %s" % (v(m), v(m), v(n)))
        it.append("v_mul_f32 %s, %s, %s" % (v(n), s(self.s_c), v(m)))
        it.append("v_mul_f32 %s, %s, %s" % (v(m), s(self.s_c), v(m)))
        it.append("v_permlane32_swap_b32 %s, %s" % (v(m), v(n)))
        for k in range(0, 10, 2):
            it.append("v_pk_fma_f32 %s, %s, %s, %s op_sel_hi:[1,1,0] neg_lo:[0,1,1] neg_hi:[0,1,1]" % (v(E + k, 2), v(P + k, 2), s(self.s_c, 2), v(n, 2)))
            it.append("v_pk_fma_f32 %s, %s, %s, %s op_sel_hi:[1,1,0] neg_lo:[0,0,1] neg_hi:[0,0,1]" % (v(P + k, 2), v(P + k, 2), s(self.s_c, 2), v(m, 2)))
        for k in range(10):
            it.append("v_exp_f32 %s, %s" % (v(E + k), v(E + k)))
            it.append("v_exp_f32 %s, %s" % (v(P + k), v(P + k)))
        it.append("v_pk_add_f32 %s, %s, %s" % (v(n, 2), v(E, 2), v(E + 2, 2)))
        it.append("v_pk_add_f32 %s, %s, %s" % (v(m, 2), v(P, 2), v(P + 2, 2)))
        for k in (4, 6, 8):
            it.append("v_pk_add_f32 %s, %s, %s" % (v(n, 2), v(n, 2), v(E + k, 2)))
            it.append("v_pk_add_f32 %s, %s, %s" % (v(m, 2), v(m, 2), v(P + k, 2)))
        it.append("v_add_f32 %s, %s, %s" % (v(n), v(n), v(n + 1)))
        it.append("v_add_f32 %s, %s, %s" % (v(m), v(m), v(m + 1)))
        it.append("v_permlane32_swap_b32 %s, %s" % (v(m), v(n)))
        it.append("v_add_f32 %s, %s, %s" % (v(m), v(m), v(n)))
        it.append("v_rcp_f32 %s, %s" % (v(m), v(m)))
        it.append("v_mov_b32 %s, %s" % (v(n), v(m)))
        it.append("v_permlane32_swap_b32 %s, %s" % (v(m), v(n)))
        for k in range(0, 10, 2):
            it.append("v_pk_mul_f32 %s, %s, %s op_sel_hi:[1,0]" % (v(P + k, 2), v(P + k, 2), v(m, 2)))
            it.append("v_pk_mul_f32 %s, %s, %s op_sel_hi:[1,0]" % (v(E + k, 2), v(E + k, 2), v(n, 2)))
        for k in range(5):
            it.append("v_cvt_pk_bf16_f32 %s, %s, %s" % (v(out + k), v(P + 2 * k), v(P + 2 * k + 1)))
        for k in range(5):
            it.append("v_cvt_pk_bf16_f32 %s, %s, %s" % (v(out + 5 + k), v(E + 2 * k), v(E + 2 * k + 1)))
        return it

    def tr2(self, dst, reg, off):
        return ["ds_read_b64_tr_b16 %s, %s offset:%d" % (v(dst + 2 * aa, 2), v(reg), off + 40 * aa) for aa in range(2)]

    def v_reads(self, dst, u):
        o = self.tr2(dst, self.vTm, VBUF + 1280 * u)
        o += ["ds_read_b64_tr_b16 %s, %s" % (v(dst + 4 + 2 * aa, 2), v(self.vVd + 2 * u + aa)) for aa in range(2)]
        return o

    def kpath(self, isA):
        A = self.A
        acc, T = self.vAcc, self.vT
        A("s_lshl_b32 %s, %s, 7" % (s(self.s_t2), s(self.s_br)))
        A("buffer_load_dword %s, off, %s, %s sc1" % (v(self.vCnt), s(self.sDBG, 4), s(self.s_t2)), "cnt")
        wq2 = self.dma_wq(2)
        if isA:
            self.emit(merge(self.exch_write(acc, KBUF) + self.exch_write(acc + 40, VBUF), wq2))
        else:
            A("v_mov_b32 %s, 0x%x" % (v(self.vPhi), NEPSC))
            self.emit(merge(self.exch_write(acc + 40, VBUF) + self.elu(acc, 40) + self.exch_write(acc, KBUF), wq2))
        A.wait_lg()
        A("s_barrier")
        self.stamp()
        side = self.dma_wq(3) + self.dma_wq(4)
        nft = 3 if isA else 2
        KVD = T
        FA = self.vF
        FV = self.vF + 12

        def kv_step(u, phoff):
            o = []
            if isA:
                o += self.tr2(FA, self.vTm, phoff) + self.tr2(FA + 4, self.vTm, phoff + 1280) + self.tr2(FA + 8, self.vT2, phoff)
            else:
                o += self.tr2(FA, self.vTm, phoff) + self.tr2(FA + 4, self.vT2, phoff)
            o += self.v_reads(FV, u)
            for ft in range(nft):
                for dt in range(2):
                    d = KVD + 8 * ft + 4 * dt
                    o.append("v_mfma_f32_16x16x32_bf16 %s, %s, %s, %s" % (v(d, 4), v(FA + 4 * ft, 4), v(FV + 4 * dt, 4), v(d, 4) if u else "0"))
            return o

        if isA:
            KF = T + 24
            P = [acc, acc + 16]
            E = [acc + 32, acc + 42]
            O = [acc + 52, acc + 62]
            main = []
            for u in range(4):
                main += self.head_reads(KF + 6 * u, u)
            for h in range(2):
                main += self.feat_mfma(P[0], KF + 12 * h) + self.feat_mfma(P[1], KF + 12 * h + 6)
                main += rr(self.softmax(P[0], E[0], O[0]), self.softmax(P[1], E[1], O[1]))
                for x in range(2):
                    for j in range(5):
                        main.append("ds_write_b64 %s, %s offset:%d" % (v(self.vPw), v(O[x] + 2 * j, 2), KBUF + 2560 * x + 8 * j))
                for x in range(2):
                    main += kv_step(2 * h + x, KBUF + 2560 * x)
            self.emit(merge(main, side, 16, 200))
        else:
            main = []
            for u in range(4):
                main += kv_step(u, KBUF + 1280 * u)
            self.emit(merge(main, side))
        A("s_mul_i32 %s, %s, %d" % (s(self.s_t0), s(self.s_rb), PSTR))
        A("s_add_u32 %s, %s, %s" % (s(self.s_t0), s(self.s_t0), s(self.s_part)))
        G = self.vF
        if isA:
            pairs = [((0, 0), (1, 0), self.vP0), ((0, 1), (1, 1), self.vP1), ((2, 0), (2, 1), self.vP2)]
        else:
            pairs = [((0, 0), (0, 1), self.vP0), ((1, 0), (1, 1), self.vP2)]
        for i, (p, q, ad) in enumerate(pairs):
            for x, (ft, dt) in enumerate((p, q)):
                d = KVD + 8 * ft + 4 * dt
                A("v_cvt_pk_bf16_f32 %s, %s, %s" % (v(G + 4 * i + 2 * x), v(d), v(d + 1)))
                A("v_cvt_pk_bf16_f32 %s, %s, %s" % (v(G + 4 * i + 2 * x + 1), v(d + 2), v(d + 3)))
        for i, (p, q, ad) in enumerate(pairs):
            A("v_permlane16_swap_b32 %s, %s" % (v(G + 4 * i), v(G + 4 * i + 2)))
            A("v_permlane16_swap_b32 %s, %s" % (v(G + 4 * i + 1), v(G + 4 * i + 3)))
        for i, (p, q, ad) in enumerate(pairs):
            A("buffer_store_dwordx4 %s, %s, %s, %s offen sc1" % (v(G + 4 * i, 4), v(ad), s(self.sWS, 4), s(self.s_t0)), "pub")
        self.stamp()

    def spin(self, name, loads, check, bound=4000, sleep=2):
        t = "%s_slow:\n    s_mov_b32 %s, 0\n%s_again:\n    s_sleep %d\n" % (name, s(self.s_cnt), name, sleep)
        B = Asm()
        B("s_nop 7")
        B(loads)
        B.wait_vm0()
        B(check)
        B("s_add_u32 %s, %s, 1" % (s(self.s_cnt), s(self.s_cnt)))
        B("s_cmp_lt_u32 %s, %d" % (s(self.s_cnt), bound))
        B("s_nop 3")
        t += B.text()
        t += "    s_cbranch_vccz %s_ok\n    s_cbranch_scc1 %s_again\n    s_branch %s_ok\n" % (name, name, name)
        self.slow.append(t)

    def checked(self, name, loads, check, **kw):
        A = self.A
        A(check)
        A("s_cbranch_vccnz %s_slow" % name)
        A.label("%s_ok" % name)
        self.spin(name, loads, check, **kw)

    def max_check(self, regs, tmp):
        regs = list(regs)
        t = ""
        cur = regs.pop(0)
        while regs:
            if len(regs) >= 2:
                t += "v_max3_u32 %s, %s, %s, %s\n" % (v(tmp), v(cur), v(regs[0]), v(regs[1]))
                regs = regs[2:]
            else:
                t += "v_max_u32 %s, %s, %s\n" % (v(tmp), v(cur), v(regs[0]))
                regs = []
            cur = tmp
        t += "v_cmp_eq_u32 vcc, -1, %s\n" % v(cur)
        return t

    def qpass(self, sfx):
        A = self.A
        RD = self.opt["RD"]
        T = self.vT
        RL = T
        A.wait_tag("wq", lg0=True)
        A("s_barrier")

        def off(f):
            k, j = f // 5, f % 5
            return WQ_R[k // 4] + 5120 * (k % 4) + 32 * j

        def mfmas(f):
            k, j = f // 5, f % 5
            o = []
            for rt in range(2):
                acc = self.vAcc + 8 * j + 4 * rt
                c = v(acc, 4) if f >= 5 else v(self.vEps, 4)
                o.append("v_mfma_f32_16x16x32_bf16 %s, %s, %s, %s" % (v(acc, 4), v(self.vF + 4 * (f % 8), 4), a(8 * k + 4 * rt, 4), c))
            return o

        rloads = ""
        for i in range(4):
            rloads += "s_add_u32 %s, %s, %d\n" % (s(self.s_t1), s(self.s_part), 4 * PSTR * i)
            rloads += "buffer_load_dwordx4 %s, %s, %s, %s offen sc1\n" % (v(RL + 4 * i, 4), v(self.vRl), s(self.sWS, 4), s(self.s_t1))

        def r1():
            cl = ("s_lshl_b32 %s, %s, 7\n" % (s(self.s_t2), s(self.s_br)) +
                  "buffer_load_dword %s, off, %s, %s sc1\n" % (v(self.vCnt), s(self.sDBG, 4), s(self.s_t2)))
            self.checked("L_cnt" + sfx, cl, "v_cmp_gt_u32 vcc, 128, %s\n" % v(self.vCnt))
            A("s_cmp_eq_u32 %s, 0" % s(self.s_slice))
            A("s_cbranch_scc1 L_r1" + sfx)
            A.begin_cond("red")
            A(rloads, "red")
            A.end_cond()
            A.label("L_r1" + sfx)

        def r2():
            A("s_cmp_eq_u32 %s, 0" % s(self.s_slice))
            A("s_cbranch_scc1 L_r2" + sfx)
            A.begin_cond("red")
            self.checked("L_red" + sfx, rloads, self.max_check(range(RL, RL + 16), RL + 16))
            D = RL + 16
            for i in range(4):
                A("v_mfma_f32_16x16x32_bf16 %s, %s, %s, %s" % (v(D, 4), v(self.vSel, 4), v(RL + 4 * i, 4), v(D, 4) if i else "0"))
            A("v_cvt_pk_bf16_f32 %s, %s, %s" % (v(RL), v(D), v(D + 1)))
            A("v_cvt_pk_bf16_f32 %s, %s, %s" % (v(RL + 1), v(D + 2), v(D + 3)))
            A("v_permlane16_swap_b32 %s, %s" % (v(RL), v(RL + 2)))
            A("v_permlane16_swap_b32 %s, %s" % (v(RL + 1), v(RL + 3)))
            A("buffer_store_dwordx4 %s, %s, %s, %s offen sc1" % (v(RL, 4), v(self.vRs), s(self.sWS, 4), s(self.s_red)), "red")
            A("s_nop 1")
            A.end_cond()
            A.label("L_r2" + sfx)

        main = []
        marks = {}
        for f in range(-RD, 100):
            if f >= 0 and f % 5 == 0:
                marks[f // 5] = len(main)
                if f // 5 == self.opt["r1_at"]:
                    main.append(r1)
                if f // 5 == self.opt["r2_at"]:
                    main.append(r2)
                if f // 5 == 8:
                    main.append("s_barrier")
            if f + RD < 100:
                main += self.frag_reads(f + RD, off(f + RD))
            if f >= 0:
                main += mfmas(f)
        marks[20] = len(main)
        out = merge(main[:marks[5]], self.dma_wo(0), 4)
        out += main[marks[5]:marks[8] + 2]
        out += merge(main[marks[8] + 2:marks[18]], self.dma_wo(1) + self.dma_wo(2))
        out += main[marks[18]:]
        self.emit(out)
        self.stamp()

    def qpath(self, isA, sfx):
        A = self.A
        acc, T = self.vAcc, self.vT
        KV = self.vKV
        if isA:
            kvl = ("buffer_load_dwordx4 %s, %s, %s, %s offen sc1\n" % (v(KV, 4), v(self.vK), s(self.sWS, 4), s(self.s_red)) +
                   "buffer_load_dwordx4 %s, %s, %s, %s offen sc1\n" % (v(KV + 4, 4), v(self.vK + 1), s(self.sWS, 4), s(self.s_red)) +
                   "buffer_load_dwordx2 %s, %s, %s, %s offen sc1\n" % (v(KV + 8, 2), v(self.vK + 2), s(self.sWS, 4), s(self.s_red)))
            kvr = range(KV, KV + 10)
        else:
            kvl = ("buffer_load_dwordx4 %s, %s, %s, %s offen sc1\n" % (v(KV, 4), v(self.vK), s(self.sWS, 4), s(self.s_red)) +
                   "buffer_load_dwordx2 %s, %s, %s, %s offen sc1\n" % (v(KV + 4, 2), v(self.vK + 2), s(self.sWS, 4), s(self.s_red)))
            kvr = range(KV, KV + 6)
        A(kvl, "kv")
        if not isA:
            self.emit(self.elu(acc, 40))
        self.emit(self.exch_write(acc, KBUF))
        A.wait_lg()
        A("s_barrier")
        self.stamp()
        side = self.dma_wo(3) + self.dma_wo(4)
        QF = T
        LF = T + 24
        P = [acc, acc + 16]
        E = [acc + 32, acc + 42]
        O = [acc + 52, acc + 62]
        G = [self.vF, self.vF + 4]
        X = T + 32

        def chk():
            self.checked("L_kv" + sfx, kvl, self.max_check(kvr, X))

        def num(D, src):
            if isA:
                return ["v_mfma_f32_32x32x16_bf16 %s, %s, %s, 0" % (v(D, 16), v(KV, 4), v(src, 4)),
                        "v_mfma_f32_32x32x16_bf16 %s, %s, %s, %s" % (v(D, 16), v(KV + 4, 4), v(src + 4, 4), v(D, 16)),
                        "v_mfma_f32_32x32x8_bf16 %s, %s, %s, %s" % (v(D, 16), v(KV + 8, 2), v(src + 8, 2), v(D, 16))]
            return ["v_mfma_f32_32x32x16_bf16 %s, %s, %s, 0" % (v(D, 16), v(KV, 4), v(src, 4)),
                    "v_mfma_f32_32x32x8_bf16 %s, %s, %s, %s" % (v(D, 16), v(KV + 4, 2), v(src + 4, 2), v(D, 16))]

        def fin(D, g, u):
            lf = LF + 4 * (u & 1) + 2 * (u >> 1)
            o = ["v_add_f32 %s, 0x%x, %s" % (v(D + 12), EPS, v(D + 12)),
                 "v_rcp_f32 %s, %s" % (v(D + 12), v(D + 12))]
            for k in range(0, 12, 2):
                o.append("v_pk_mul_f32 %s, %s, %s op_sel_hi:[1,0]" % (v(D + k, 2), v(D + k, 2), v(D + 12, 2)))
            for k in range(4):
                o.append("v_cvt_pk_bf16_f32 %s, %s, %s" % (v(g + k), v(D + 2 * k), v(D + 2 * k + 1)))
            o.append(("buffer_store_dwordx4 %s, %s, %s, %s offen offset:%d sc1" % (v(g, 4), v(self.vL16), s(self.sWS, 4), s(self.s_ost), 1024 * u), "ost"))
            for k in range(2):
                o.append("v_cvt_pk_bf16_f32 %s, %s, %s" % (v(lf + k), v(D + 8 + 2 * k), v(D + 9 + 2 * k)))
            return o

        main = []
        for u in range(4):
            main += self.head_reads(QF + 6 * u, u)
        for h in range(2):
            if isA:
                main += self.feat_mfma(P[0], QF + 12 * h) + self.feat_mfma(P[1], QF + 12 * h + 6)
                main += rr(self.softmax(P[0], E[0], O[0]), self.softmax(P[1], E[1], O[1]))
                src = O
            else:
                src = [QF + 12 * h, QF + 12 * h + 6]
            if h == 0:
                main.append(chk)
            main += num(P[0], src[0]) + num(P[1], src[1])
            main += rr(fin(P[0], G[0], 2 * h), fin(P[1], G[1], 2 * h + 1))
        self.emit(merge(main, side, 12, 150 if isA else len(main) - 10))
        for k in range(4):
            A("v_permlane32_swap_b32 %s, %s" % (v(LF + k), v(LF + 4 + k)))
        A("s_add_u32 %s, %s, 4096" % (s(self.s_t1), s(self.s_ost)))
        A("buffer_store_dwordx4 %s, %s, %s, %s offen sc1" % (v(LF, 4), v(self.vL16), s(self.sWS, 4), s(self.s_t1)), "ost")
        self.stamp()

    def outproj(self, sfx):
        A = self.A
        RD = self.opt["RD"]
        acc, T = self.vAcc, self.vT
        LX = acc + 40
        X = T
        A.wait_vm0()
        A("s_barrier")
        self.stamp()
        A("s_mov_b32 %s, 0" % s(self.s_slot))
        A.label("L_redo" + sfx)

        def gloads(gi):
            t = ""
            if gi < 4:
                for i in range(4 * gi, 4 * gi + 4):
                    t += "s_add_u32 %s, %s, %d\n" % (s(self.s_t0), s(self.s_rot), i)
                    t += "s_and_b32 %s, %s, 15\n" % (s(self.s_t0), s(self.s_t0))
                    t += "s_mul_i32 %s, %s, 10240\n" % (s(self.s_t0), s(self.s_t0))
                    t += "s_add_u32 %s, %s, %s\n" % (s(self.s_t0), s(self.s_t0), s(self.s_old))
                    for rt in range(2):
                        t += "buffer_load_dwordx4 %s, %s, %s, %s offen offset:%d sc1\n" % (a(8 * i + 4 * rt, 4), v(self.vOm), s(self.sWS, 4), s(self.s_t0), 2048 * rt)
            else:
                t += "s_lshr_b32 %s, %s, 2\n" % (s(self.s_t1), s(self.s_rot))
                for i in range(4):
                    t += "s_add_u32 %s, %s, %d\n" % (s(self.s_t0), s(self.s_t1), i)
                    t += "s_and_b32 %s, %s, 3\n" % (s(self.s_t0), s(self.s_t0))
                    t += "s_mul_i32 %s, %s, 40960\n" % (s(self.s_t0), s(self.s_t0))
                    t += "s_add_u32 %s, %s, %s\n" % (s(self.s_t0), s(self.s_t0), s(self.s_old))
                    for x in range(2):
                        t += "buffer_load_dwordx4 %s, %s, %s, %s offen sc1\n" % (v(LX + 8 * i + 4 * x, 4), v(self.vOx + x), s(self.sWS, 4), s(self.s_t0))
            return t

        def gcheck(gi):
            if gi < 4:
                t = ""
                for k in range(8):
                    t += "v_accvgpr_read_b32 %s, %s\n" % (v(X + k), a(32 * gi + 4 * k))
                return t + self.max_check(range(X, X + 8), X + 8)
            return self.max_check(range(LX, LX + 32, 4), X + 8)

        def off(f):
            k, j = f // 5, f % 5
            return WO_R[k // 4] + 5120 * (k % 4) + 32 * j

        def mfmas(f):
            k, j = f // 5, f % 5
            o = []
            for rt in range(2):
                d = acc + 8 * j + 4 * rt
                b = a(8 * k + 4 * rt, 4) if k < 16 else v(LX + 8 * (k - 16) + 4 * rt, 4)
                o.append("v_mfma_f32_16x16x32_bf16 %s, %s, %s, %s" % (v(d, 4), v(self.vF + 4 * (f % 8), 4), b, v(d, 4) if f >= 5 else "0"))
            return o

        def mk(gi):
            def fn():
                self.checked("L_o%d%s" % (gi, sfx), gloads(gi), gcheck(gi), bound=2000)
                if gi == 4:
                    for i in range(4):
                        A("v_swap_b32 %s, %s" % (v(LX + 8 * i + 2), v(LX + 8 * i + 4)))
                        A("v_swap_b32 %s, %s" % (v(LX + 8 * i + 3), v(LX + 8 * i + 5)))
            return fn

        A(gloads(0))
        A(gloads(1))
        for gi in range(5):
            main = []
            for f in range(20 * gi - (RD if gi == 0 else 0), 20 * gi + 20):
                if f == 20 * gi:
                    main.append(mk(gi))
                if f + RD < 100:
                    main += self.frag_reads(f + RD, off(f + RD))
                if f >= 0:
                    main += mfmas(f)
            side = gloads(gi + 2).strip().split("\n") if gi + 2 < 5 else []
            st = 2 * RD + 1 if gi == 0 else 1
            self.emit(merge(main, side, st))
        self.stamp()
        A("v_cmp_u_f32 vcc, %s, %s" % (v(acc), v(acc + 4)))
        A("s_cbranch_vccnz L_nan" + sfx)
        A.label("L_nanok" + sfx)
        self.slow.append("L_nan%s:\n    s_add_u32 %s, %s, 1\n    s_cmp_lt_u32 %s, 4\n    s_nop 7\n    s_nop 7\n    s_cbranch_scc1 L_redo%s\n    s_branch L_nanok%s\n"
                         % (sfx, s(self.s_slot), s(self.s_slot), s(self.s_slot), sfx, sfx))
        G = self.vF
        A("s_add_u32 %s, %s, 163840" % (s(self.s_t1), s(self.s_outb)))
        jobs = [((0, 0), (1, 0), self.vSo, self.s_outb, 0), ((0, 1), (1, 1), self.vSo, self.s_t1, 0),
                ((2, 0), (3, 0), self.vSo, self.s_outb, 64), ((2, 1), (3, 1), self.vSo, self.s_t1, 64),
                ((4, 0), (4, 1), self.vSo4, self.s_outb, 0)]
        for i, (p, q, ad, so, imm) in enumerate(jobs):
            g = G + 4 * i
            for x, (j, rt) in enumerate((p, q)):
                d = acc + 8 * j + 4 * rt
                A("v_cvt_pk_bf16_f32 %s, %s, %s" % (v(g + 2 * x), v(d), v(d + 1)))
                A("v_cvt_pk_bf16_f32 %s, %s, %s" % (v(g + 2 * x + 1), v(d + 2), v(d + 3)))
        for i, (p, q, ad, so, imm) in enumerate(jobs):
            g = G + 4 * i
            A("v_permlane16_swap_b32 %s, %s" % (v(g), v(g + 2)))
            A("v_permlane16_swap_b32 %s, %s" % (v(g + 1), v(g + 3)))
            A("buffer_store_dwordx4 %s, %s, %s, %s offen offset:%d %s" % (v(g, 4), v(ad), s(self.sOUT, 4), s(so), imm, self.opt["outflag"]))
        self.stamp()
        if self.stamps:
            A.wait_vm0()
            self.stamp()
            self.dump_stamps()
        A("s_endpgm")

    def dump_stamps(self):
        A = self.A
        T = self.vT
        pool = list(range(self.s_st, 100, 2)) + list(range(4, 24, 2))
        A("s_memrealtime %s" % s(self.s_ord, 2))
        A("s_waitcnt lgkmcnt(0)")
        A("s_lshl_b32 %s, s2, 2" % s(self.s_t0))
        A("s_add_u32 %s, %s, %s" % (s(self.s_t0), s(self.s_t0), s(self.s_w)))
        A("s_lshl_b32 %s, %s, 7" % (s(self.s_t0), s(self.s_t0)))
        A("s_add_u32 %s, %s, 0x%x" % (s(self.s_t0), s(self.s_t0), STATS))
        A("s_mov_b64 exec, 1")
        for i in range(self.nst):
            A("s_sub_u32 %s, %s, %s" % (s(self.s_t1), s(pool[i]), s(pool[0])))
            A("v_mov_b32 %s, %s" % (v(T), s(self.s_t1)))
            A("buffer_store_dword %s, off, %s, %s offset:%d" % (v(T), s(self.sWS, 4), s(self.s_t0), 4 * i))
        A("v_mov_b32 %s, s100" % v(T))
        A("buffer_store_dword %s, off, %s, %s offset:120" % (v(T), s(self.sWS, 4), s(self.s_t0)))
        A("v_mov_b32 %s, %s" % (v(T), s(self.s_ord)))
        A("buffer_store_dword %s, off, %s, %s offset:124" % (v(T), s(self.sWS, 4), s(self.s_t0)))

    def build(self):
        A = self.A
        self.prologue()
        self.setup()
        self.pass1()
        A("s_cmp_eq_u32 %s, 0" % s(self.s_br))
        A("s_cbranch_scc0 L_B")
        snap = A.snapshot()
        n0 = self.nst
        for isA, sfx in ((True, "A"), (False, "B")):
            if not isA:
                A.label("L_B")
                A.restore(snap)
                self.nst = n0
            self.kpath(isA)
            self.qpass(sfx)
            self.qpath(isA, sfx)
            self.outproj(sfx)
        body = A.text() + "".join(self.slow)
        head = open("cdna_kernels/%s.s.ref" % NAME).read().split("; Override launch")[0]
        txt = head
        txt += "; Generated by gen/gen.py (hand-written generator): one persistent launch, 256 workgroups, one per CU.\n"
        txt += "; @launch grid=(256,1,1) block=(256,1,1) lds=%d\n" % LDS_BYTES
        txt += '.amdgcn_target "amdgcn-amd-amdhsa--gfx950"\n.text\n.globl %s\n.p2align 8\n.type %s,@function\n%s:\n' % (KNAME, KNAME, KNAME)
        txt += body
        txt += "L_end:\n    s_endpgm\nL_codeend:\n.set CODE_BYTES, L_codeend - %s - 64\n" % KNAME
        txt += """.section .rodata,"a"
.p2align 6
.amdhsa_kernel %s
  .amdhsa_next_free_vgpr 416
  .amdhsa_next_free_sgpr 102
  .amdhsa_accum_offset 256
  .amdhsa_group_segment_fixed_size 0
  .amdhsa_kernarg_size 80
  .amdhsa_user_sgpr_count 2
  .amdhsa_user_sgpr_kernarg_segment_ptr 1
  .amdhsa_system_sgpr_workgroup_id_x 1
.end_amdhsa_kernel
""" % KNAME
        return txt


if __name__ == "__main__":
    out = sys.argv[1] if len(sys.argv) > 1 else "cdna_kernels/%s.s" % NAME
    import json
    opt = {}
    for x in sys.argv[2:]:
        if "=" in x:
            k, val = x.split("=", 1)
            opt[k] = json.loads(val)
    g = Gen(stamps=("stamps" in sys.argv), opt=opt)
    txt = g.build()
    open(out, "w").write(txt)
    print("wrote", out, len(txt), "bytes; nops", g.A.nops, "vT", g.vT, "s_st", g.s_st, "stamps", g.nst)
```

```python
import sys
sys.path.insert(0, "gen")
from asmlib import Asm, merge, rr

NAME = "concat_heads__linear_kernel_hedgehog__linear_attn_block__prompt"
KNAME = NAME + "_kernel"

SLOT = 36864
KBUF, VBUF = 40960, 61440
WQ_R = [110592, 131072, 81920, 0, 20480]
WO_R = [VBUF, WQ_R[0], WQ_R[1], WQ_R[2], WQ_R[3]]
PHIST = 151552
ONES = 155648
LDS_BYTES = 163840
PSTR = 1792
PART = 0
RED = 0x200000
OBUF = 0x300000
STATS = 0x900000
OOB = 0x40000000
LOG2E = 0x3fb8aa3b
EPS = 0x358637bd
NEPSC = 0xb5c1a2f1


class Regs:
    def __init__(self, kind, lo, hi):
        self.kind, self.next, self.hi = kind, lo, hi
        self.names = {}

    def alloc(self, name, n=1, align=1):
        self.next = (self.next + align - 1) // align * align
        r = self.next
        self.next += n
        assert self.next <= self.hi, "out of %s regs at %s" % (self.kind, name)
        self.names[name] = r
        return r


def v(i, n=1):
    return "v%d" % i if n == 1 else "v[%d:%d]" % (i, i + n - 1)


def a(i, n=1):
    return "a%d" % i if n == 1 else "a[%d:%d]" % (i, i + n - 1)


def s(i, n=1):
    return "s%d" % i if n == 1 else "s[%d:%d]" % (i, i + n - 1)


class Gen:
    def __init__(self, stamps=False, opt=None):
        self.A = Asm()
        self.stamps = stamps
        self.opt = dict(RD=4, r1_at=6, r2_at=13, orders=None, o_delay=0, pf=1, outflag="", touch=0, badmap=0, diag=0, padto=0, echo=None)
        if opt:
            self.opt.update(opt)
        self.nst = 0
        self.slow = []
        self.alloc()

    def alloc(self):
        S = Regs("s", 24, 102)
        self.sX = S.alloc("X", 4, 4)
        self.sW = S.alloc("W", 4, 4)
        self.sWO = S.alloc("WO", 4, 4)
        self.sWS = S.alloc("WS", 4, 4)
        self.sOUT = S.alloc("OUT", 4, 4)
        self.sAUX = S.alloc("AUX", 4, 4)
        self.sDBG = S.alloc("DBG", 4, 4)
        for nm in ("br", "rb", "hg", "w", "slot", "xbase", "wbase", "m0b", "t0", "t1", "t2", "part", "red", "slice",
                   "ost", "old", "wob", "rot", "outb", "cnt"):
            setattr(self, "s_" + nm, S.alloc(nm))
        self.s_ord = S.alloc("ord", 2, 2)
        self.s_ordq = S.alloc("ordq", 2, 2)
        self.s_c = S.alloc("c", 2, 2)
        self.s_st = S.alloc("stamps", 0, 2)
        self.S = S
        V = Regs("v", 1, 256)
        self.vl = V.alloc("lane")
        self.vXa = V.alloc("Xa", 4)
        self.vWa = V.alloc("Wa", 5)
        self.vOa = V.alloc("Oa", 5)
        self.vOl = V.alloc("Ol", 5)
        self.vWr = V.alloc("Wr", 3)
        self.vXr = V.alloc("Xr", 4)
        self.vEx = V.alloc("Ex", 5)
        self.vHr0 = V.alloc("Hr0")
        self.vHr4 = V.alloc("Hr4")
        self.vPw = V.alloc("Pw")
        self.vTm = V.alloc("Tm")
        self.vT2 = V.alloc("T2")
        self.vVd = V.alloc("Vd", 8)
        self.vL16 = V.alloc("L16")
        self.vP0 = V.alloc("P0")
        self.vP1 = V.alloc("P1")
        self.vP2 = V.alloc("P2")
        self.vRl = V.alloc("Rl")
        self.vRs = V.alloc("Rs")
        self.vK = V.alloc("K", 3)
        self.vOm = V.alloc("Om")
        self.vOx = V.alloc("Ox", 2)
        self.vSo = V.alloc("So")
        self.vSo4 = V.alloc("So4")
        self.vCnt = V.alloc("Cnt")
        self.vSel = V.alloc("Sel", 4, 4)
        self.vEps = V.alloc("Eps", 4, 4)
        self.vPhi = V.alloc("Phi", 6, 4)
        self.vKV = V.alloc("KV", 10, 2)
        self.vF = V.alloc("F", 32, 4)
        self.vAcc = V.alloc("Acc", 80, 4)
        self.vT = V.alloc("T", 0, 4)
        self.V = V

    def stamp(self):
        if self.opt["echo"]:
            if self.nst == self.opt["echo"][0]:
                self.A("s_memrealtime s[96:97]")
            if self.nst == self.opt["echo"][1]:
                self.A("s_memrealtime s[98:99]")
            self.nst += 1
        if not self.stamps:
            return
        pool = list(range(self.s_st, 100, 2)) + list(range(4, 24, 2))
        r = pool[self.nst]
        self.nst += 1
        self.A("s_memtime %s" % s(r, 2))

    def emit(self, items):
        for it in items:
            if callable(it):
                it()
            elif isinstance(it, tuple):
                self.A(it[0], it[1])
            else:
                self.A(it)

    def ds(self, bases, off):
        return v(bases + off // 65536), off % 65536

    def prologue(self):
        A = self.A
        l = self.vl
        T = self.vT
        A("s_cmp_ge_u32 s2, 256")
        A("s_cbranch_scc1 L_end")
        if self.opt["diag"]:
            A("s_getreg_b32 s3, hwreg(HW_REG_XCC_ID)")
            A("s_and_b32 s3, s3, 15")
            A("s_and_b32 s4, s2, 7")
            A("s_cmp_eq_u32 s3, s4")
            A("s_cbranch_scc1 L_dg")
            for i in range(5):
                A("s_sleep 127")
            A.label("L_dg")
        if self.opt["badmap"]:
            A("s_lshr_b32 s3, s2, 5")
            A("s_and_b32 s2, s2, 31")
            A("s_lshl_b32 s2, s2, 3")
            A("s_or_b32 s2, s2, s3")
        A("s_load_dwordx16 s[4:19], s[0:1], 0")
        A("s_load_dwordx4 s[20:23], s[0:1], 64")
        if self.stamps or self.opt["padto"]:
            A("s_memrealtime s[100:101]")
        self.stamp()
        A("s_getpc_b64 %s" % s(self.sAUX, 2))
        A("s_mov_b32 %s, CODE_BYTES" % s(self.sAUX + 2))
        A("s_mov_b32 %s, 0x20000" % s(self.sAUX + 3))
        A("s_lshr_b32 %s, s2, 3" % s(self.s_slot))
        A("s_lshl_b32 %s, %s, 11" % (s(self.s_t0), s(self.s_slot)))
        A("v_lshlrev_b32 %s, 7, v0" % v(T))
        A("v_cmp_gt_u32 vcc, %d, v0" % (16 if self.opt["pf"] else 0))
        A("v_mov_b32 %s, 0x%x" % (v(T + 1), OOB))
        A("v_lshrrev_b32 %s, 6, v0" % v(T + 2))
        A("v_cndmask_b32 %s, %s, %s, vcc" % (v(T), v(T + 1), v(T)))
        A("v_and_b32 %s, 63, v0" % v(l))
        A("v_readfirstlane_b32 %s, %s" % (s(self.s_w), v(T + 2)))
        A("buffer_load_dword %s, %s, %s, %s offen" % (v(self.vCnt), v(T), s(self.sAUX, 4), s(self.s_t0)), "pf")
        A("s_bfe_u32 %s, s2, 0x10002" % s(self.s_br))
        A("s_bfe_u32 %s, s2, 0x10001" % s(self.s_t0))
        A("s_and_b32 %s, %s, 7" % (s(self.s_t1), s(self.s_slot)))
        A("s_lshl_b32 %s, %s, 3" % (s(self.s_t0), s(self.s_t0)))
        A("s_add_u32 %s, %s, %s" % (s(self.s_rb), s(self.s_t0), s(self.s_t1)))
        A("s_lshr_b32 %s, %s, 3" % (s(self.s_t2), s(self.s_slot)))
        A("s_and_b32 %s, s2, 1" % s(self.s_t0))
        A("s_lshl_b32 %s, %s, 2" % (s(self.s_t0), s(self.s_t0)))
        A("s_add_u32 %s, %s, %s" % (s(self.s_hg), s(self.s_t0), s(self.s_t2)))
        orders = self.opt["orders"] or [[(st + t) % 10 for t in range(10)] for st in (0, 2, 5, 7)]
        words = []
        for o in orders:
            assert sorted(o) == list(range(10))
            x = sum(c << (4 * t) for t, c in enumerate(o))
            words.append((x & 0xffffffff, x >> 32))
        A("s_add_u32 %s, %s, %s" % (s(self.s_t1), s(self.s_t1), s(self.s_t2)))
        A("s_and_b32 %s, %s, %d" % (s(self.s_t1), s(self.s_t1), len(orders) - 1))
        A("s_mov_b32 %s, 0x%x" % (s(self.s_ord), words[0][0]))
        A("s_mov_b32 %s, 0x%x" % (s(self.s_ord + 1), words[0][1]))
        for i in range(1, len(orders)):
            A("s_cmp_eq_u32 %s, %d" % (s(self.s_t1), i))
            A("s_cselect_b32 %s, 0x%x, %s" % (s(self.s_ord), words[i][0], s(self.s_ord)))
            A("s_cselect_b32 %s, 0x%x, %s" % (s(self.s_ord + 1), words[i][1], s(self.s_ord + 1)))
        A("v_lshrrev_b32 %s, 3, %s" % (v(T), v(l)))
        A("v_lshrrev_b32 %s, 4, %s" % (v(T + 1), v(l)))
        A("v_and_b32 %s, 7, %s" % (v(T + 2), v(l)))
        A("v_mul_u32_u24 %s, 1280, %s" % (v(T), v(T)))
        A("v_xor_b32 %s, %s, %s" % (v(T + 2), v(T + 2), v(T + 1)))
        A("v_lshl_add_u32 %s, %s, 4, %s" % (v(self.vXa), v(T + 2), v(T)))
        A("v_xor_b32 %s, 64, %s" % (v(T), v(self.vXa)))
        A("v_add_u32 %s, 9216, %s" % (v(self.vXa + 1), v(T)))
        A("v_add_u32 %s, 18432, %s" % (v(self.vXa + 2), v(self.vXa)))
        A("v_add_u32 %s, 27648, %s" % (v(self.vXa + 3), v(T)))
        for j in range(5):
            A("v_add_u32 %s, %d, %s" % (v(T), 64 * j, v(l)))
            A("v_mul_u32_u24 %s, 0xccd, %s" % (v(T + 1), v(T)))
            A("v_lshrrev_b32 %s, 15, %s" % (v(self.vOa + j), v(T + 1)))
            A("v_mul_u32_u24 %s, 10, %s" % (v(T + 1), v(self.vOa + j)))
            A("v_sub_u32 %s, %s, %s" % (v(T), v(T), v(T + 1)))
            A("v_lshlrev_b32 %s, 4, %s" % (v(T), v(T)))
            A("v_subrev_u32 %s, %d, %s" % (v(self.vOl + j), 1024 * (j % 4), v(T)))
            A("v_and_b32 %s, 12, %s" % (v(T), v(self.vOa + j)))
            A("v_lshrrev_b32 %s, 4, %s" % (v(T + 1), v(self.vOa + j)))
            A("v_and_b32 %s, 3, %s" % (v(T + 2), v(self.vOa + j)))
            A("v_lshl_add_u32 %s, %s, 1, %s" % (v(T), v(T), v(T + 2)))
            A("v_lshl_add_u32 %s, %s, 2, %s" % (v(T), v(T + 1), v(T)))
            A("v_mul_u32_u24 %s, 3840, %s" % (v(T), v(T)))
            A("v_add_u32 %s, %s, %s" % (v(self.vWa + j), v(T), v(self.vOl + j)))
        A("s_lshl_b32 %s, %s, 2" % (s(self.s_t0), s(self.s_rb)))
        A("s_add_u32 %s, %s, %s" % (s(self.s_t0), s(self.s_t0), s(self.s_w)))
        A("s_mul_i32 %s, %s, 40960" % (s(self.s_xbase), s(self.s_t0)))
        A("s_and_b32 %s, %s, 1" % (s(self.s_t0), s(self.s_w)))
        A("s_mul_i32 %s, %s, 122880" % (s(self.s_t0), s(self.s_t0)))
        A("s_mul_i32 %s, %s, 160" % (s(self.s_t1), s(self.s_hg)))
        A("s_add_u32 %s, %s, %s" % (s(self.s_cnt), s(self.s_t0), s(self.s_t1)))
        A("s_lshr_b32 %s, %s, 1" % (s(self.s_t0), s(self.s_w)))
        A("s_lshl_b32 %s, %s, 2" % (s(self.s_t1), s(self.s_t0)))
        A("s_lshr_b64 %s, %s, %s" % (s(self.s_ordq, 2), s(self.s_ord, 2), s(self.s_t1)))
        A("s_add_u32 %s, %s, 1" % (s(self.s_t0), s(self.s_t0)))
        A("s_mul_i32 %s, %s, 1280" % (s(self.s_t0), s(self.s_t0)))
        A("s_add_u32 %s, %s, %s" % (s(self.s_wbase), s(self.s_cnt), s(self.s_t0)))
        A("s_mul_i32 %s, %s, 9216" % (s(self.s_m0b), s(self.s_w)))
        A("s_mov_b32 %s, 2621440" % s(self.sX + 2))
        A("s_mov_b32 %s, 0x20000" % s(self.sX + 3))
        A("s_mov_b32 %s, 2457600" % s(self.sW + 2))
        A("s_mov_b32 %s, 0x20000" % s(self.sW + 3))
        A("s_cmp_eq_u32 %s, 0" % s(self.s_br))
        A("s_waitcnt lgkmcnt(0)")
        A("s_cselect_b32 %s, s4, s12" % s(self.sX))
        A("s_cselect_b32 %s, s5, s13" % s(self.sX + 1))
        A("s_cselect_b32 %s, s6, s14" % s(self.sW))
        A("s_cselect_b32 %s, s7, s15" % s(self.sW + 1))
        A("s_cselect_b32 %s, s10, s16" % s(self.sWO))
        A("s_cselect_b32 %s, s11, s17" % s(self.sWO + 1))
        self.emit(self.dma_chunk(0))
        self.emit(self.dma_chunk(1))
        self.stamp()

    def dma_chunk(self, t):
        base = (t % 3) * SLOT
        tag = "c%d" % t
        it = []
        w, sh = (self.s_ord, 4 * t) if t < 8 else (self.s_ord + 1, 4 * (t - 8))
        it.append("s_bfe_u32 %s, %s, 0x%x\n" % (s(self.s_t0), s(w), 0x40000 | sh) +
                  "s_lshl_b32 %s, %s, 7\n" % (s(self.s_t1), s(self.s_t0)) +
                  "s_add_u32 %s, %s, %s\n" % (s(self.s_t1), s(self.s_t1), s(self.s_xbase)) +
                  "s_add_u32 m0, %s, %d\n" % (s(self.s_m0b), base + 4096) +
                  "s_mul_i32 %s, %s, 245760\n" % (s(self.s_t0), s(self.s_t0)) +
                  "s_add_u32 %s, %s, %s\n" % (s(self.s_t0), s(self.s_t0), s(self.s_wbase)))
        for j in range(4):
            it.append(("buffer_load_dwordx4 %s, %s, %s offen offset:%d lds" % (v(self.vWa + j), s(self.sW, 4), s(self.s_t0), 1024 * j), tag))
        it.append("s_add_u32 m0, %s, %d" % (s(self.s_m0b), base + 8192))
        it.append(("buffer_load_dwordx4 %s, %s, %s offen lds" % (v(self.vWa + 4), s(self.sW, 4), s(self.s_t0)), tag))
        it.append("s_add_u32 m0, %s, %d" % (s(self.s_m0b), base))
        for j in range(4):
            it.append(("buffer_load_dwordx4 %s, %s, %s offen offset:%d lds" % (v(self.vXa + j), s(self.sX, 4), s(self.s_t1), 1024 * j), tag))
        return it

    def dma_block(self, pre, va, srd, ldsbase, tag):
        it = [pre + "s_add_u32 m0, %s, %d\n" % (s(self.s_m0b), ldsbase)]
        for j in range(4):
            it.append(("buffer_load_dwordx4 %s, %s, %s offen offset:%d lds" % (v(va + j), s(srd, 4), s(self.s_t0), 1024 * j), tag))
        it.append("s_add_u32 m0, %s, %d" % (s(self.s_m0b), ldsbase + 4096))
        it.append(("buffer_load_dwordx4 %s, %s, %s offen lds" % (v(va + 4), s(srd, 4), s(self.s_t0)), tag))
        return it

    def dma_wq(self, r):
        w, sh = (self.s_ordq, 8 * r) if r < 4 else (self.s_ordq + 1, 0)
        pre = ("s_bfe_u32 %s, %s, 0x%x\n" % (s(self.s_t0), s(w), 0x40000 | sh) +
               "s_mul_i32 %s, %s, 245760\n" % (s(self.s_t0), s(self.s_t0)) +
               "s_add_u32 %s, %s, %s\n" % (s(self.s_t0), s(self.s_t0), s(self.s_wbase)))
        return self.dma_block(pre, self.vWa, self.sW, WQ_R[r], "wq")

    def dma_wo(self, r):
        if r < 4:
            pre = ("s_add_u32 %s, %s, %d\n" % (s(self.s_t0), s(self.s_rot), 4 * r) +
                   "s_add_u32 %s, %s, %s\n" % (s(self.s_t0), s(self.s_t0), s(self.s_w)) +
                   "s_and_b32 %s, %s, 15\n" % (s(self.s_t0), s(self.s_t0)) +
                   "s_mul_i32 %s, %s, 51200\n" % (s(self.s_t0), s(self.s_t0)))
            va = self.vOa
        else:
            pre = ("s_lshr_b32 %s, %s, 2\n" % (s(self.s_t0), s(self.s_rot)) +
                   "s_add_u32 %s, %s, %s\n" % (s(self.s_t0), s(self.s_t0), s(self.s_w)) +
                   "s_and_b32 %s, %s, 3\n" % (s(self.s_t0), s(self.s_t0)) +
                   "s_mul_i32 %s, %s, 204800\n" % (s(self.s_t0), s(self.s_t0)))
            va = self.vOl
        pre += "s_add_u32 %s, %s, %s\n" % (s(self.s_t0), s(self.s_t0), s(self.s_wob))
        return self.dma_block(pre, va, self.sWO, WO_R[r], "wo")

    def setup(self):
        A = self.A
        l = self.vl
        T = self.vT
        g, i16, hf, s32, oob, r_, c_ = T + 8, T + 9, T + 10, T + 11, T + 12, T + 13, T + 14
        A("s_mov_b32 %s, 819200" % s(self.sWO + 2))
        A("s_mov_b32 %s, 0x20000" % s(self.sWO + 3))
        A("s_mov_b32 %s, s22" % s(self.sWS))
        A("s_mov_b32 %s, s23" % s(self.sWS + 1))
        A("s_mov_b32 %s, 0x10000000" % s(self.sWS + 2))
        A("s_mov_b32 %s, 0x20000" % s(self.sWS + 3))
        A("s_mov_b32 %s, s18" % s(self.sOUT))
        A("s_mov_b32 %s, s19" % s(self.sOUT + 1))
        A("s_mov_b32 %s, 5242880" % s(self.sOUT + 2))
        A("s_mov_b32 %s, 0x20000" % s(self.sOUT + 3))
        A("s_mov_b32 %s, s20" % s(self.sDBG))
        A("s_mov_b32 %s, s21" % s(self.sDBG + 1))
        A("s_mov_b32 %s, 256" % s(self.sDBG + 2))
        A("s_mov_b32 %s, 0x20000" % s(self.sDBG + 3))
        A("s_mov_b32 %s, s8" % s(self.sAUX))
        A("s_mov_b32 %s, s9" % s(self.sAUX + 1))
        A("s_mov_b32 %s, 25600" % s(self.sAUX + 2))
        A("s_mov_b32 %s, 0x%x" % (s(self.s_c), LOG2E))
        A("s_mov_b32 %s, 0x%x" % (s(self.s_c + 1), LOG2E))
        A("v_lshlrev_b32 %s, 4, %s" % (v(self.vL16), v(l)))
        A("s_lshl_b32 %s, %s, 2" % (s(self.s_t2), s(self.s_hg)))
        A("s_add_u32 %s, %s, %s" % (s(self.s_t2), s(self.s_t2), s(self.s_w)))
        A("s_mul_i32 %s, %s, 800" % (s(self.s_t0), s(self.s_t2)))
        A("s_lshl_b32 %s, %s, 10" % (s(self.s_t1), s(self.s_w)))
        A("s_add_u32 m0, %s, %d" % (s(self.s_t1), PHIST))
        A("s_nop 0")
        A("buffer_load_dwordx4 %s, %s, %s offen lds" % (v(self.vL16), s(self.sAUX, 4), s(self.s_t0)), "phi")
        A("s_lshl_b32 %s, %s, 5" % (s(self.s_t0), s(self.s_br)))
        A("s_add_u32 %s, %s, %s" % (s(self.s_t0), s(self.s_t0), s(self.s_t2)))
        A("s_mul_i32 %s, %s, %d" % (s(self.s_part), s(self.s_t0), 16 * PSTR))
        A("s_mul_i32 %s, %s, %d" % (s(self.s_red), s(self.s_t0), PSTR))
        A("s_add_u32 %s, %s, 0x%x" % (s(self.s_red), s(self.s_red), RED))
        A("s_lshl_b32 %s, %s, 4" % (s(self.s_t0), s(self.s_br)))
        A("s_add_u32 %s, %s, %s" % (s(self.s_t1), s(self.s_t0), s(self.s_rb)))
        A("s_lshl_b32 %s, %s, 5" % (s(self.s_t1), s(self.s_t1)))
        A("s_add_u32 %s, %s, %s" % (s(self.s_t1), s(self.s_t1), s(self.s_t2)))
        A("s_mul_i32 %s, %s, 5120" % (s(self.s_ost), s(self.s_t1)))
        A("s_add_u32 %s, %s, 0x%x" % (s(self.s_ost), s(self.s_ost), OBUF))
        A("s_and_b32 %s, s2, 3" % s(self.s_t1))
        A("s_lshl_b32 %s, %s, 2" % (s(self.s_t1), s(self.s_t1)))
        A("s_and_b32 %s, %s, 3" % (s(self.s_t2), s(self.s_slot)))
        A("s_add_u32 %s, %s, %s" % (s(self.s_t1), s(self.s_t1), s(self.s_t2)))
        A("s_add_u32 %s, %s, %s" % (s(self.s_t0), s(self.s_t0), s(self.s_t1)))
        A("s_mul_i32 %s, %s, 163840" % (s(self.s_old), s(self.s_t0)))
        A("s_add_u32 %s, %s, 0x%x" % (s(self.s_old), s(self.s_old), OBUF))
        A("s_mul_i32 %s, %s, 327680" % (s(self.s_outb), s(self.s_t1)))
        A("s_lshr_b32 %s, %s, 2" % (s(self.s_t0), s(self.s_slot)))
        A("s_mul_i32 %s, %s, 160" % (s(self.s_wob), s(self.s_t0)))
        A("s_add_u32 %s, %s, %s" % (s(self.s_outb), s(self.s_outb), s(self.s_wob)))
        A("s_mul_i32 %s, %s, 1280" % (s(self.s_t1), s(self.s_br)))
        A("s_add_u32 %s, %s, %s" % (s(self.s_outb), s(self.s_outb), s(self.s_t1)))
        A("s_lshl_b32 %s, %s, 1" % (s(self.s_t2), s(self.s_t2)))
        A("s_add_u32 %s, %s, %s" % (s(self.s_t0), s(self.s_t0), s(self.s_t2)))
        A("s_lshl_b32 %s, %s, 1" % (s(self.s_t0), s(self.s_t0)))
        A("s_and_b32 %s, %s, 15" % (s(self.s_rot), s(self.s_t0)))
        A("s_lshl_b32 %s, %s, 2" % (s(self.s_t0), s(self.s_w)))
        A("s_sub_u32 %s, %s, %s" % (s(self.s_t0), s(self.s_rb), s(self.s_t0)))
        A("s_and_b32 %s, %s, 15" % (s(self.s_slice), s(self.s_t0)))
        A("v_lshrrev_b32 %s, 4, %s" % (v(g), v(l)))
        A("v_and_b32 %s, 15, %s" % (v(i16), v(l)))
        A("v_lshrrev_b32 %s, 5, %s" % (v(hf), v(l)))
        A("v_and_b32 %s, 31, %s" % (v(s32), v(l)))
        A("v_mov_b32 %s, 0x%x" % (v(oob), OOB))
        A("v_bfe_u32 %s, %s, 2, 2" % (v(r_), v(l)))
        A("v_and_b32 %s, 3, %s" % (v(c_), v(l)))
        dd = T + 15
        A("v_lshrrev_b32 %s, 3, %s" % (v(T), v(s32)))
        A("v_lshl_add_u32 %s, %s, 2, %s" % (v(T), v(T), v(c_)))
        A("v_bfe_u32 %s, %s, 2, 1" % (v(T + 1), v(l)))
        A("v_lshl_add_u32 %s, %s, 3, %s" % (v(T + 2), v(T + 1), v(T)))
        A("v_add_u32 %s, 8, %s" % (v(T + 3), v(T)))
        A("v_min_u32 %s, 20, %s" % (v(T + 3), v(T + 3)))
        A("v_cmp_gt_u32 vcc, 8, %s" % v(T))
        A("v_mul_u32_u24 %s, 10, %s" % (v(T + 4), v(T + 1)))
        A("v_min_u32 %s, 9, %s" % (v(T + 5), v(T)))
        A("v_cndmask_b32 %s, %s, %s, vcc" % (v(dd), v(T + 3), v(T + 2)))
        ff = T + 16
        A("v_add_u32 %s, %s, %s" % (v(ff), v(T + 4), v(T + 5)))
        A("s_cmp_eq_u32 %s, 0" % s(self.s_br))
        A("s_cbranch_scc0 L_setB")
        A("v_mov_b32 %s, %s" % (v(self.vP0), v(self.vL16)))
        A("v_mul_u32_u24 %s, 80, %s" % (v(T), v(g)))
        A("v_lshl_add_u32 %s, %s, 4, %s" % (v(T), v(i16), v(T)))
        A("v_cmp_gt_u32 vcc, 5, %s" % v(i16))
        A("v_add_u32 %s, 1024, %s" % (v(T), v(T)))
        A("v_add_u32 %s, 1344, %s" % (v(T + 1), v(self.vL16)))
        A("v_cndmask_b32 %s, %s, %s, vcc" % (v(self.vP1), v(oob), v(T)))
        A("v_cmp_gt_u32 vcc, 16, %s" % v(dd))
        A("v_mov_b32 %s, 80" % v(T + 2))
        A("v_mov_b32 %s, 768" % v(T + 3))
        A("v_mov_b32 %s, 256" % v(T + 4))
        A("v_cndmask_b32 %s, %s, %s, vcc" % (v(T + 2), v(T + 2), v(T + 4)))
        A("v_cndmask_b32 %s, %s, 0, vcc" % (v(T + 3), v(T + 3)))
        A("v_lshl_add_u32 %s, %s, 4, %s" % (v(T + 3), v(dd), v(T + 3)))
        A("v_mad_u32_u24 %s, %s, %s, %s" % (v(self.vK), v(hf), v(T + 2), v(T + 3)))
        A("v_lshl_add_u32 %s, %s, 1, %s" % (v(self.vK + 1), v(T + 2), v(self.vK)))
        A("v_lshlrev_b32 %s, 3, %s" % (v(T + 2), v(hf)))
        A("v_lshl_add_u32 %s, %s, 4, %s" % (v(T + 2), v(dd), v(T + 2)))
        A("v_add_u32 %s, 1344, %s" % (v(self.vK + 2), v(T + 2)))
        A("v_and_b32 %s, 1, %s" % (v(T + 2), v(l)))
        A("v_mul_u32_u24 %s, 1280, %s" % (v(self.vT2), v(T + 2)))
        A("v_mov_b32 %s, 0" % v(self.vEps))
        A("s_mov_b32 %s, 104" % s(self.s_t0))
        A("s_mov_b32 %s, 7" % s(self.s_t1))
        A("s_branch L_setJ")
        A.label("L_setB")
        A("v_mul_u32_u24 %s, 336, %s" % (v(T + 2), v(hf)))
        A("v_cmp_gt_u32 vcc, 21, %s" % v(s32))
        A("v_lshl_add_u32 %s, %s, 4, %s" % (v(T), v(s32), v(T + 2)))
        A("v_mov_b32 %s, %s" % (v(self.vP1), v(oob)))
        A("v_cndmask_b32 %s, %s, %s, vcc" % (v(self.vP0), v(oob), v(T)))
        A("v_add_u32 %s, 672, %s" % (v(T + 1), v(self.vL16)))
        A("v_lshl_add_u32 %s, %s, 4, %s" % (v(self.vK), v(dd), v(T + 2)))
        A("v_cmp_gt_u32 vcc, 32, %s" % v(l))
        A("v_lshlrev_b32 %s, 4, %s" % (v(T + 2), v(dd)))
        A("v_add_u32 %s, 672, %s" % (v(T + 2), v(T + 2)))
        A("v_mov_b32 %s, %s" % (v(self.vK + 1), v(oob)))
        A("v_cndmask_b32 %s, %s, %s, vcc" % (v(self.vK + 2), v(oob), v(T + 2)))
        A("v_mov_b32 %s, 0" % v(self.vT2))
        A("v_mov_b32 %s, 0x%x" % (v(self.vEps), EPS))
        A("s_mov_b32 %s, 62" % s(self.s_t0))
        A("s_mov_b32 %s, 4" % s(self.s_t1))
        A.label("L_setJ")
        A("s_nop 1")
        A("v_cmp_gt_u32 vcc, 21, %s" % v(l))
        A("v_mov_b32 %s, %s" % (v(self.vEps + 1), v(self.vEps)))
        A("v_mov_b32 %s, %s" % (v(self.vEps + 2), v(self.vEps)))
        A("v_cndmask_b32 %s, %s, %s, vcc" % (v(self.vP2), v(oob), v(T + 1)))
        A("v_mov_b32 %s, %s" % (v(self.vEps + 3), v(self.vEps)))
        A("s_lshl_b32 %s, %s, 4" % (s(self.s_t2), s(self.s_slice)))
        A("v_add_u32 %s, %s, %s" % (v(T), s(self.s_t2), v(i16)))
        A("v_min_u32 %s, %s, %s" % (v(T), s(self.s_t0), v(T)))
        A("v_lshlrev_b32 %s, 4, %s" % (v(T), v(T)))
        A("v_mul_u32_u24 %s, %d, %s" % (v(T + 1), PSTR, v(g)))
        A("v_add_u32 %s, %s, %s" % (v(self.vRl), v(T), v(T + 1)))
        A("s_cmp_lt_u32 %s, %s" % (s(self.s_slice), s(self.s_t1)))
        A("s_cselect_b32 %s, 16, 0" % s(self.s_t2))
        A("s_cselect_b32 %s, 1, 0" % s(self.s_slice))
        A("v_cmp_gt_u32 vcc, %s, %s" % (s(self.s_t2), v(l)))
        A("v_mov_b32 %s, -1" % v(T + 4))
        A("v_mov_b32 %s, -1" % v(T + 5))
        A("v_cndmask_b32 %s, %s, %s, vcc" % (v(self.vRs), v(oob), v(T)))
        A("v_mov_b32 %s, -1" % v(T + 6))
        A("v_mov_b32 %s, -1" % v(T + 7))
        A("s_mul_i32 %s, %s, %d" % (s(self.s_t0), s(self.s_rb), PSTR))
        A("s_add_u32 %s, %s, %s" % (s(self.s_t0), s(self.s_t0), s(self.s_part)))
        A("s_add_u32 %s, %s, 4096" % (s(self.s_t1), s(self.s_ost)))
        for r in (self.vP0, self.vP1, self.vP2):
            A("buffer_store_dwordx4 %s, %s, %s, %s offen sc1" % (v(T + 4, 4), v(r), s(self.sWS, 4), s(self.s_t0)), "clr")
        A("buffer_store_dwordx4 %s, %s, %s, %s offen sc1" % (v(T + 4, 4), v(self.vRs), s(self.sWS, 4), s(self.s_red)), "clr")
        for u in range(4):
            A("buffer_store_dwordx4 %s, %s, %s, %s offen offset:%d sc1" % (v(T + 4, 4), v(self.vL16), s(self.sWS, 4), s(self.s_ost), 1024 * u), "clr")
        A("buffer_store_dwordx4 %s, %s, %s, %s offen sc1" % (v(T + 4, 4), v(self.vL16), s(self.sWS, 4), s(self.s_t1)), "clr")
        A("v_lshrrev_b32 %s, 2, %s" % (v(T), v(l)))
        A("v_mul_u32_u24 %s, 160, %s" % (v(T), v(T)))
        A("v_lshl_add_u32 %s, %s, 3, %s" % (v(self.vWr), v(c_), v(T)))
        A("v_add_u32 %s, 0x10000, %s" % (v(self.vWr + 1), v(self.vWr)))
        A("v_add_u32 %s, 0x20000, %s" % (v(self.vWr + 2), v(self.vWr)))
        A("v_lshrrev_b32 %s, 1, %s" % (v(T), v(i16)))
        A("v_xor_b32 %s, %s, %s" % (v(T), v(T), v(g)))
        A("v_lshlrev_b32 %s, 4, %s" % (v(T), v(T)))
        A("v_lshl_add_u32 %s, %s, 7, %s" % (v(T), v(i16), v(T)))
        A("v_add_u32 %s, %s, %s" % (v(self.vXr), s(self.s_m0b), v(T)))
        A("v_add_u32 %s, 0x10000, %s" % (v(self.vXr + 1), v(self.vXr)))
        A("v_xor_b32 %s, 64, %s" % (v(self.vXr + 2), v(self.vXr)))
        A("v_add_u32 %s, 0x10000, %s" % (v(self.vXr + 3), v(self.vXr + 2)))
        A("s_mul_i32 %s, %s, 1280" % (s(self.s_t0), s(self.s_w)))
        A("v_mul_u32_u24 %s, 40, %s" % (v(T), v(i16)))
        A("v_add_u32 %s, %s, %s" % (v(T), s(self.s_t0), v(T)))
        for j in range(5):
            A("v_add_u32 %s, %d, %s" % (v(T + 1), 4 * j, v(g)))
            A("v_mul_u32_u24 %s, 52, %s" % (v(T + 2), v(T + 1)))
            A("v_lshrrev_b32 %s, 8, %s" % (v(T + 2), v(T + 2)))
            A("v_mul_u32_u24 %s, 5080, %s" % (v(T + 2), v(T + 2)))
            A("v_lshl_add_u32 %s, %s, 3, %s" % (v(T + 2), v(T + 1), v(T + 2)))
            A("v_add_u32 %s, %s, %s" % (v(self.vEx + j), v(T + 2), v(T)))
        A("s_mul_i32 %s, %s, 5120" % (s(self.s_t0), s(self.s_w)))
        A("v_mul_u32_u24 %s, 40, %s" % (v(T), v(s32)))
        A("v_add_u32 %s, %s, %s" % (v(T), s(self.s_t0), v(T)))
        A("v_lshl_add_u32 %s, %s, 4, %s" % (v(self.vHr0), v(hf), v(T)))
        A("v_add_u32 %s, 32, %s" % (v(self.vHr4), v(T)))
        A("v_mul_u32_u24 %s, 40, %s" % (v(T), v(l)))
        A("v_add_u32 %s, %s, %s" % (v(self.vPw), s(self.s_t0), v(T)))
        A("v_bfe_u32 %s, %s, 2, 3" % (v(T), v(l)))
        A("v_lshlrev_b32 %s, 1, %s" % (v(T + 1), v(hf)))
        A("v_lshl_add_u32 %s, %s, 2, %s" % (v(T), v(T), v(T + 1)))
        A("v_mul_u32_u24 %s, 40, %s" % (v(T), v(T)))
        A("v_add_u32 %s, %s, %s" % (v(T), s(self.s_t0), v(T)))
        A("v_lshl_add_u32 %s, %s, 3, %s" % (v(self.vTm), v(c_), v(T)))
        A("v_add3_u32 %s, %s, %s, 32" % (v(self.vT2), v(self.vT2), v(T)))
        A("v_cmp_eq_u32 vcc, 0, %s" % v(c_))
        A("v_mov_b32 %s, %d" % (v(T + 1), ONES))
        for u in range(4):
            for aa in range(2):
                A("v_add_u32 %s, %d, %s" % (v(T + 2), VBUF + 32 + u * 1280 + 40 * aa, v(T)))
                A("v_cndmask_b32 %s, %s, %s, vcc" % (v(self.vVd + 2 * u + aa), v(T + 1), v(T + 2)))
        A("v_mov_b32 %s, 0x3f803f80" % v(T + 2))
        A("v_mov_b32 %s, 0x3f803f80" % v(T + 3))
        A("ds_write_b64 %s, %s" % (v(T + 1), v(T + 2, 2)))
        A("v_mov_b32 %s, 0x3f80" % v(T + 2))
        A("v_and_b32 %s, 1, %s" % (v(T + 3), v(l)))
        A("v_lshlrev_b32 %s, 4, %s" % (v(T + 3), v(T + 3)))
        A("v_lshlrev_b32 %s, %s, %s" % (v(T + 2), v(T + 3), v(T + 2)))
        A("v_lshrrev_b32 %s, 1, %s" % (v(T + 3), v(i16)))
        for q in range(4):
            A("v_cmp_eq_u32 vcc, %d, %s" % (q, v(T + 3)))
            A("v_cndmask_b32 %s, 0, %s, vcc" % (v(self.vSel + q), v(T + 2)))
        for j in range(5):
            p = self.vOa + j
            A("v_bfe_u32 %s, %s, 2, 2" % (v(T), v(p)))
            A("v_lshrrev_b32 %s, 4, %s" % (v(T + 1), v(p)))
            A("v_and_b32 %s, 3, %s" % (v(T + 2), v(p)))
            A("v_lshl_add_u32 %s, %s, 1, %s" % (v(T + 3), v(T), v(T + 1)))
            A("v_mad_u32_u24 %s, %s, 20, %s" % (v(T + 3), v(T + 3), v(T + 2)))
            A("v_add_u32 %s, 16, %s" % (v(T + 3), v(T + 3)))
            A("v_lshl_add_u32 %s, %s, 2, %s" % (v(T + 2), v(T + 1), v(T + 2)))
            A("v_lshl_add_u32 %s, %s, 3, %s" % (v(T + 2), v(T), v(T + 2)))
            A("v_lshrrev_b32 %s, 1, %s" % (v(T), v(T)))
            A("v_lshl_add_u32 %s, %s, 2, %s" % (v(T + 2), v(T), v(T + 2)))
            A("v_mul_u32_u24 %s, 1280, %s" % (v(T + 2), v(T + 2)))
            A("v_mul_u32_u24 %s, 1280, %s" % (v(T + 3), v(T + 3)))
            A("v_add_u32 %s, %s, %s" % (v(p), v(T + 2), v(self.vOl + j)))
            A("v_add_u32 %s, %s, %s" % (v(self.vOl + j), v(T + 3), v(self.vOl + j)))
        A("s_lshr_b32 %s, %s, 1" % (s(self.s_t0), s(self.s_w)))
        A("s_and_b32 %s, %s, 1" % (s(self.s_t1), s(self.s_w)))
        A("s_lshl_b32 %s, %s, 10" % (s(self.s_t2), s(self.s_t0)))
        A("s_lshl_b32 %s, %s, 8" % (s(self.s_t1), s(self.s_t1)))
        A("s_add_u32 %s, %s, %s" % (s(self.s_t2), s(self.s_t2), s(self.s_t1)))
        A("v_and_b32 %s, 1, %s" % (v(T + 1), v(g)))
        A("v_mul_u32_u24 %s, 5120, %s" % (v(T), v(hf)))
        A("v_lshl_add_u32 %s, %s, 9, %s" % (v(T), v(T + 1), v(T)))
        A("v_lshl_add_u32 %s, %s, 4, %s" % (v(T), v(i16), v(T)))
        A("v_add_u32 %s, %s, %s" % (v(self.vOm), s(self.s_t2), v(T)))
        A("s_lshl_b32 %s, %s, 8" % (s(self.s_t2), s(self.s_w)))
        A("s_add_u32 %s, %s, 4096" % (s(self.s_t2), s(self.s_t2)))
        A("v_mul_u32_u24 %s, 10240, %s" % (v(T), v(g)))
        A("v_lshl_add_u32 %s, %s, 4, %s" % (v(T), v(i16), v(T)))
        A("v_add_u32 %s, %s, %s" % (v(self.vOx), s(self.s_t2), v(T)))
        A("v_add_u32 %s, 5120, %s" % (v(self.vOx + 1), v(self.vOx)))
        A("s_mul_i32 %s, %s, 40960" % (s(self.s_t2), s(self.s_w)))
        A("s_add_u32 %s, %s, %s" % (s(self.s_outb), s(self.s_outb), s(self.s_t2)))
        A("v_mul_u32_u24 %s, 2560, %s" % (v(T), v(i16)))
        A("v_lshl_add_u32 %s, %s, 4, %s" % (v(T), v(hf), v(T)))
        A("v_lshl_add_u32 %s, %s, 5, %s" % (v(self.vSo), v(T + 1), v(T)))
        A("v_mul_u32_u24 %s, 163840, %s" % (v(T + 1), v(T + 1)))
        A("v_add3_u32 %s, %s, %s, 64" % (v(T), v(T), v(T + 1)))
        A("v_add_u32 %s, 64, %s" % (v(self.vSo4), v(T)))
        if self.opt["touch"]:
            A("buffer_load_dword %s, off, %s, %s" % (v(T + 40), s(self.sOUT, 4), s(self.s_outb)), "touch")
            A("buffer_load_dword %s, off, %s, %s" % (v(T + 41), s(self.sWO, 4), s(self.s_wob)), "touch")
        self.vPg = T + 17
        A("s_lshl_b32 %s, %s, 10" % (s(self.s_t0), s(self.s_w)))
        A("s_add_u32 %s, %s, %d" % (s(self.s_t0), s(self.s_t0), PHIST))
        A("v_lshlrev_b32 %s, 1, %s" % (v(T), v(ff)))
        A("v_add_u32 %s, %s, %s" % (v(self.vPg + 1), s(self.s_t0), v(T)))
        A("v_mul_u32_u24 %s, 320, %s" % (v(T), v(hf)))
        A("v_add_u32 %s, %s, %s" % (v(self.vPg), v(self.vPg + 1), v(T)))
        self.vHfKeep = hf

    def phi_frags(self):
        T = self.vT + 20
        it = [lambda: self.A.wait_tag("phi")]
        for j in range(8):
            it.append("ds_read_u16 %s, %s offset:%d" % (v(T + j), v(self.vPg), 40 * j))
        for j in range(4):
            it.append("ds_read_u16 %s, %s offset:%d" % (v(T + 8 + j), v(self.vPg + 1), 640 + 40 * j))
        it.append("v_cmp_eq_u32 vcc, 0, %s" % v(self.vHfKeep))
        for q in range(6):
            it.append("v_lshl_or_b32 %s, %s, 16, %s" % (v(self.vPhi + q), v(T + 2 * q + 1), v(T + 2 * q)))
        for q in (4, 5):
            it.append("v_cndmask_b32 %s, 0, %s, vcc" % (v(self.vPhi + q), v(self.vPhi + q)))
        return it

    def frag_reads(self, f, off):
        r = self.vF + 4 * (f % 8)
        out = []
        for aa in range(2):
            reg, imm = self.ds(self.vWr, off + 2560 * aa)
            out.append("ds_read_b64_tr_b16 %s, %s offset:%d" % (v(r + 2 * aa, 2), reg, imm))
        return out

    def pass1(self):
        A = self.A
        RD = self.opt["RD"]

        def off(f):
            t, ks, j = f // 20, (f % 20) // 10, f % 10
            return (t % 3) * SLOT + (2 * (j // 5) + ks) * 9216 + 4096 + 32 * (j % 5)

        def mfmas(f):
            t, ks, j = f // 20, (f % 20) // 10, f % 10
            o = []
            for rt in range(2):
                acc = self.vAcc + 8 * j + 4 * rt
                c = v(acc, 4) if f >= 10 else (v(self.vEps, 4) if j < 5 else "0")
                o.append("v_mfma_f32_16x16x32_bf16 %s, %s, %s, %s" % (v(acc, 4), v(self.vF + 4 * (f % 8), 4), a(16 * t + 8 * ks + 4 * rt, 4), c))
            return o

        def boundary(t):
            o = [lambda: A.wait_tag("c%d" % t, lg0=True)]
            if t == 2:
                o.append(lambda: A.wait_tag("clr"))
            for ks in range(2):
                for rt in range(2):
                    reg, imm = self.ds(self.vXr + 2 * ks, (t % 3) * SLOT + 2048 * rt)
                    o.append("ds_read_b128 %s, %s offset:%d" % (a(16 * t + 8 * ks + 4 * rt, 4), reg, imm))
            o.append("s_barrier")
            return o

        self.emit(boundary(0))
        self.stamp()
        for t in range(10):
            main = []
            lo = 20 * t - RD
            for f in range(lo, lo + 20):
                main += self.frag_reads(f + RD, off(f + RD))
                if f >= 0:
                    main += mfmas(f)
            if t < 8:
                side = self.dma_chunk(t + 2)
            else:
                side = []
                if t == 8:
                    side.append("s_mul_i32 %s, %s, 5120\ns_mov_b32 %s, %s" % (s(self.s_m0b), s(self.s_w), s(self.s_wbase), s(self.s_cnt)))
                side += self.dma_wq(t - 8)
            if t == 1:
                side = side + self.phi_frags()
            if t == 2:
                side = [self.count_in] + side
            self.emit(merge(main, side, 2, len(main) - 6))
            if t < 9:
                self.emit(boundary(t + 1))
        for f in range(200 - RD, 200):
            self.emit(mfmas(f))
        self.stamp()

    def count_in(self):
        A = self.A
        A("s_cmp_eq_u32 %s, 0" % s(self.s_w))
        A("s_cbranch_scc0 L_nocnt")
        A.begin_cond("cnt")
        A("s_lshl_b32 %s, %s, 7" % (s(self.s_t2), s(self.s_br)))
        A("s_mov_b64 exec, 1")
        A("v_mov_b32 %s, 1" % v(self.vCnt))
        A("buffer_atomic_add %s, off, %s, %s sc1" % (v(self.vCnt), s(self.sDBG, 4), s(self.s_t2)))
        A("s_mov_b64 exec, -1")
        A.end_cond()
        A.label("L_nocnt")

    def elu(self, acc, n):
        T = self.vT
        it = []
        for b in range(0, n, 8):
            for k in range(0, 8, 2):
                it.append("v_pk_fma_f32 %s, %s, %s, %s op_sel_hi:[1,1,0]" % (v(T + k, 2), v(acc + b + k, 2), s(self.s_c, 2), v(self.vPhi, 2)))
            for k in range(8):
                it.append("v_exp_f32_e64 %s, %s clamp" % (v(T + k), v(T + k)))
                it.append("v_max_f32_e64 %s, %s, %s" % (v(acc + b + k), v(acc + b + k), v(self.vEps)))
            for k in range(0, 8, 2):
                it.append("v_pk_add_f32 %s, %s, %s" % (v(acc + b + k, 2), v(acc + b + k, 2), v(T + k, 2)))
        return it

    def exch_write(self, acc, buf):
        it = []
        for j in range(5):
            for rt in range(2):
                r = acc + 8 * j + 4 * rt
                it.append("v_cvt_pk_bf16_f32 %s, %s, %s" % (v(r), v(r), v(r + 1)))
                it.append("v_cvt_pk_bf16_f32 %s, %s, %s" % (v(r + 1), v(r + 2), v(r + 3)))
                it.append("ds_write_b64 %s, %s offset:%d" % (v(self.vEx + j), v(r, 2), buf + 640 * rt))
        return it

    def head_reads(self, dst, u):
        return ["ds_read_b64 %s, %s offset:%d" % (v(dst, 2), v(self.vHr0), KBUF + 1280 * u),
                "ds_read_b64 %s, %s offset:%d" % (v(dst + 2, 2), v(self.vHr0), KBUF + 1280 * u + 8),
                "ds_read_b64 %s, %s offset:%d" % (v(dst + 4, 2), v(self.vHr4), KBUF + 1280 * u)]

    def feat_mfma(self, D, src):
        return ["v_mfma_f32_32x32x16_bf16 %s, %s, %s, 0" % (v(D, 16), v(self.vPhi, 4), v(src, 4)),
                "v_mfma_f32_32x32x8_bf16 %s, %s, %s, %s" % (v(D, 16), v(self.vPhi + 4, 2), v(src + 4, 2), v(D, 16))]

    def softmax(self, P, E, out):
        m, n = P + 10, P + 12
        it = []
        it.append("v_max3_f32 %s, %s, %s, %s" % (v(m), v(P), v(P + 1), v(P + 2)))
        it.append("v_max3_f32 %s, -%s, -%s, -%s" % (v(n), v(P), v(P + 1), v(P + 2)))
        for k in (3, 5, 7):
            it.append("v_max3_f32 %s, %s, %s, %s" % (v(m), v(m), v(P + k), v(P + k + 1)))
            it.append("v_max3_f32 %s, %s, -%s, -%s" % (v(n), v(n), v(P + k), v(P + k + 1)))
        it.append("v_max_f32_e64 %s, %s, %s" % (v(m), v(m), v(P + 9)))
        it.append("v_max_f32_e64 %s, %s, -%s" % (v(n), v(n), v(P + 9)))
        it.append("v_permlane32_swap_b32 %s, %s" % (v(m), v(n)))
        it.append("v_max_f32 %s, %s, %s" % (v(m), v(m), v(n)))
        it.append("v_mul_f32 %s, %s, %s" % (v(n), s(self.s_c), v(m)))
        it.append("v_mul_f32 %s, %s, %s" % (v(m), s(self.s_c), v(m)))
        it.append("v_permlane32_swap_b32 %s, %s" % (v(m), v(n)))
        for k in range(0, 10, 2):
            it.append("v_pk_fma_f32 %s, %s, %s, %s op_sel_hi:[1,1,0] neg_lo:[0,1,1] neg_hi:[0,1,1]" % (v(E + k, 2), v(P + k, 2), s(self.s_c, 2), v(n, 2)))
            it.append("v_pk_fma_f32 %s, %s, %s, %s op_sel_hi:[1,1,0] neg_lo:[0,0,1] neg_hi:[0,0,1]" % (v(P + k, 2), v(P + k, 2), s(self.s_c, 2), v(m, 2)))
        for k in range(10):
            it.append("v_exp_f32 %s, %s" % (v(E + k), v(E + k)))
            it.append("v_exp_f32 %s, %s" % (v(P + k), v(P + k)))
        it.append("v_pk_add_f32 %s, %s, %s" % (v(n, 2), v(E, 2), v(E + 2, 2)))
        it.append("v_pk_add_f32 %s, %s, %s" % (v(m, 2), v(P, 2), v(P + 2, 2)))
        for k in (4, 6, 8):
            it.append("v_pk_add_f32 %s, %s, %s" % (v(n, 2), v(n, 2), v(E + k, 2)))
            it.append("v_pk_add_f32 %s, %s, %s" % (v(m, 2), v(m, 2), v(P + k, 2)))
        it.append("v_add_f32 %s, %s, %s" % (v(n), v(n), v(n + 1)))
        it.append("v_add_f32 %s, %s, %s" % (v(m), v(m), v(m + 1)))
        it.append("v_permlane32_swap_b32 %s, %s" % (v(m), v(n)))
        it.append("v_add_f32 %s, %s, %s" % (v(m), v(m), v(n)))
        it.append("v_rcp_f32 %s, %s" % (v(m), v(m)))
        it.append("v_mov_b32 %s, %s" % (v(n), v(m)))
        it.append("v_permlane32_swap_b32 %s, %s" % (v(m), v(n)))
        for k in range(0, 10, 2):
            it.append("v_pk_mul_f32 %s, %s, %s op_sel_hi:[1,0]" % (v(P + k, 2), v(P + k, 2), v(m, 2)))
            it.append("v_pk_mul_f32 %s, %s, %s op_sel_hi:[1,0]" % (v(E + k, 2), v(E + k, 2), v(n, 2)))
        for k in range(5):
            it.append("v_cvt_pk_bf16_f32 %s, %s, %s" % (v(out + k), v(P + 2 * k), v(P + 2 * k + 1)))
        for k in range(5):
            it.append("v_cvt_pk_bf16_f32 %s, %s, %s" % (v(out + 5 + k), v(E + 2 * k), v(E + 2 * k + 1)))
        return it

    def tr2(self, dst, reg, off):
        return ["ds_read_b64_tr_b16 %s, %s offset:%d" % (v(dst + 2 * aa, 2), v(reg), off + 40 * aa) for aa in range(2)]

    def v_reads(self, dst, u):
        o = self.tr2(dst, self.vTm, VBUF + 1280 * u)
        o += ["ds_read_b64_tr_b16 %s, %s" % (v(dst + 4 + 2 * aa, 2), v(self.vVd + 2 * u + aa)) for aa in range(2)]
        return o

    def kpath(self, isA):
        A = self.A
        acc, T = self.vAcc, self.vT
        A("s_lshl_b32 %s, %s, 7" % (s(self.s_t2), s(self.s_br)))
        A("buffer_load_dword %s, off, %s, %s sc1" % (v(self.vCnt), s(self.sDBG, 4), s(self.s_t2)), "cnt")
        wq2 = self.dma_wq(2)
        if isA:
            self.emit(merge(self.exch_write(acc, KBUF) + self.exch_write(acc + 40, VBUF), wq2))
        else:
            A("v_mov_b32 %s, 0x%x" % (v(self.vPhi), NEPSC))
            self.emit(merge(self.exch_write(acc + 40, VBUF) + self.elu(acc, 40) + self.exch_write(acc, KBUF), wq2))
        A.wait_lg()
        A("s_barrier")
        self.stamp()
        side = self.dma_wq(3) + self.dma_wq(4)
        nft = 3 if isA else 2
        KVD = T
        FA = self.vF
        FV = self.vF + 12

        def kv_step(u, phoff):
            o = []
            if isA:
                o += self.tr2(FA, self.vTm, phoff) + self.tr2(FA + 4, self.vTm, phoff + 1280) + self.tr2(FA + 8, self.vT2, phoff)
            else:
                o += self.tr2(FA, self.vTm, phoff) + self.tr2(FA + 4, self.vT2, phoff)
            o += self.v_reads(FV, u)
            for ft in range(nft):
                for dt in range(2):
                    d = KVD + 8 * ft + 4 * dt
                    o.append("v_mfma_f32_16x16x32_bf16 %s, %s, %s, %s" % (v(d, 4), v(FA + 4 * ft, 4), v(FV + 4 * dt, 4), v(d, 4) if u else "0"))
            return o

        if isA:
            KF = T + 24
            P = [acc, acc + 16]
            E = [acc + 32, acc + 42]
            O = [acc + 52, acc + 62]
            main = []
            for u in range(4):
                main += self.head_reads(KF + 6 * u, u)
            for h in range(2):
                main += self.feat_mfma(P[0], KF + 12 * h) + self.feat_mfma(P[1], KF + 12 * h + 6)
                main += rr(self.softmax(P[0], E[0], O[0]), self.softmax(P[1], E[1], O[1]))
                for x in range(2):
                    for j in range(5):
                        main.append("ds_write_b64 %s, %s offset:%d" % (v(self.vPw), v(O[x] + 2 * j, 2), KBUF + 2560 * x + 8 * j))
                for x in range(2):
                    main += kv_step(2 * h + x, KBUF + 2560 * x)
            self.emit(merge(main, side, 16, 200))
        else:
            main = []
            for u in range(4):
                main += kv_step(u, KBUF + 1280 * u)
            self.emit(merge(main, side))
        A("s_mul_i32 %s, %s, %d" % (s(self.s_t0), s(self.s_rb), PSTR))
        A("s_add_u32 %s, %s, %s" % (s(self.s_t0), s(self.s_t0), s(self.s_part)))
        G = self.vF
        if isA:
            pairs = [((0, 0), (1, 0), self.vP0), ((0, 1), (1, 1), self.vP1), ((2, 0), (2, 1), self.vP2)]
        else:
            pairs = [((0, 0), (0, 1), self.vP0), ((1, 0), (1, 1), self.vP2)]
        for i, (p, q, ad) in enumerate(pairs):
            for x, (ft, dt) in enumerate((p, q)):
                d = KVD + 8 * ft + 4 * dt
                A("v_cvt_pk_bf16_f32 %s, %s, %s" % (v(G + 4 * i + 2 * x), v(d), v(d + 1)))
                A("v_cvt_pk_bf16_f32 %s, %s, %s" % (v(G + 4 * i + 2 * x + 1), v(d + 2), v(d + 3)))
        for i, (p, q, ad) in enumerate(pairs):
            A("v_permlane16_swap_b32 %s, %s" % (v(G + 4 * i), v(G + 4 * i + 2)))
            A("v_permlane16_swap_b32 %s, %s" % (v(G + 4 * i + 1), v(G + 4 * i + 3)))
        for i, (p, q, ad) in enumerate(pairs):
            A("buffer_store_dwordx4 %s, %s, %s, %s offen sc1" % (v(G + 4 * i, 4), v(ad), s(self.sWS, 4), s(self.s_t0)), "pub")
        self.stamp()

    def spin(self, name, loads, check, bound=4000, sleep=2):
        t = "%s_slow:\n    s_mov_b32 %s, 0\n%s_again:\n    s_sleep %d\n" % (name, s(self.s_cnt), name, sleep)
        B = Asm()
        B("s_nop 7")
        B(loads)
        B.wait_vm0()
        B(check)
        B("s_add_u32 %s, %s, 1" % (s(self.s_cnt), s(self.s_cnt)))
        B("s_cmp_lt_u32 %s, %d" % (s(self.s_cnt), bound))
        B("s_nop 3")
        t += B.text()
        t += "    s_cbranch_vccz %s_ok\n    s_cbranch_scc1 %s_again\n    s_branch %s_ok\n" % (name, name, name)
        self.slow.append(t)

    def checked(self, name, loads, check, **kw):
        A = self.A
        A(check)
        A("s_cbranch_vccnz %s_slow" % name)
        A.label("%s_ok" % name)
        self.spin(name, loads, check, **kw)

    def max_check(self, regs, tmp):
        regs = list(regs)
        t = ""
        cur = regs.pop(0)
        while regs:
            if len(regs) >= 2:
                t += "v_max3_u32 %s, %s, %s, %s\n" % (v(tmp), v(cur), v(regs[0]), v(regs[1]))
                regs = regs[2:]
            else:
                t += "v_max_u32 %s, %s, %s\n" % (v(tmp), v(cur), v(regs[0]))
                regs = []
            cur = tmp
        t += "v_cmp_eq_u32 vcc, -1, %s\n" % v(cur)
        return t

    def qpass(self, sfx):
        A = self.A
        RD = self.opt["RD"]
        T = self.vT
        RL = T
        A.wait_tag("wq", lg0=True)
        A("s_barrier")

        def off(f):
            k, j = f // 5, f % 5
            return WQ_R[k // 4] + 5120 * (k % 4) + 32 * j

        def mfmas(f):
            k, j = f // 5, f % 5
            o = []
            for rt in range(2):
                acc = self.vAcc + 8 * j + 4 * rt
                c = v(acc, 4) if f >= 5 else v(self.vEps, 4)
                o.append("v_mfma_f32_16x16x32_bf16 %s, %s, %s, %s" % (v(acc, 4), v(self.vF + 4 * (f % 8), 4), a(8 * k + 4 * rt, 4), c))
            return o

        rloads = ""
        for i in range(4):
            rloads += "s_add_u32 %s, %s, %d\n" % (s(self.s_t1), s(self.s_part), 4 * PSTR * i)
            rloads += "buffer_load_dwordx4 %s, %s, %s, %s offen sc1\n" % (v(RL + 4 * i, 4), v(self.vRl), s(self.sWS, 4), s(self.s_t1))

        def r1():
            cl = ("s_lshl_b32 %s, %s, 7\n" % (s(self.s_t2), s(self.s_br)) +
                  "buffer_load_dword %s, off, %s, %s sc1\n" % (v(self.vCnt), s(self.sDBG, 4), s(self.s_t2)))
            self.checked("L_cnt" + sfx, cl, "v_cmp_gt_u32 vcc, 128, %s\n" % v(self.vCnt))
            A("s_cmp_eq_u32 %s, 0" % s(self.s_slice))
            A("s_cbranch_scc1 L_r1" + sfx)
            A.begin_cond("red")
            A(rloads, "red")
            A.end_cond()
            A.label("L_r1" + sfx)

        def r2():
            A("s_cmp_eq_u32 %s, 0" % s(self.s_slice))
            A("s_cbranch_scc1 L_r2" + sfx)
            A.begin_cond("red")
            self.checked("L_red" + sfx, rloads, self.max_check(range(RL, RL + 16), RL + 16))
            D = RL + 16
            for i in range(4):
                A("v_mfma_f32_16x16x32_bf16 %s, %s, %s, %s" % (v(D, 4), v(self.vSel, 4), v(RL + 4 * i, 4), v(D, 4) if i else "0"))
            A("v_cvt_pk_bf16_f32 %s, %s, %s" % (v(RL), v(D), v(D + 1)))
            A("v_cvt_pk_bf16_f32 %s, %s, %s" % (v(RL + 1), v(D + 2), v(D + 3)))
            A("v_permlane16_swap_b32 %s, %s" % (v(RL), v(RL + 2)))
            A("v_permlane16_swap_b32 %s, %s" % (v(RL + 1), v(RL + 3)))
            A("buffer_store_dwordx4 %s, %s, %s, %s offen sc1" % (v(RL, 4), v(self.vRs), s(self.sWS, 4), s(self.s_red)), "red")
            A("s_nop 1")
            A.end_cond()
            A.label("L_r2" + sfx)

        main = []
        marks = {}
        for f in range(-RD, 100):
            if f >= 0 and f % 5 == 0:
                marks[f // 5] = len(main)
                if f // 5 == self.opt["r1_at"]:
                    main.append(r1)
                if f // 5 == self.opt["r2_at"]:
                    main.append(r2)
                if f // 5 == 8:
                    main.append("s_barrier")
            if f + RD < 100:
                main += self.frag_reads(f + RD, off(f + RD))
            if f >= 0:
                main += mfmas(f)
        marks[20] = len(main)
        out = merge(main[:marks[5]], self.dma_wo(0), 4)
        out += main[marks[5]:marks[8] + 2]
        out += merge(main[marks[8] + 2:marks[18]], self.dma_wo(1) + self.dma_wo(2))
        out += main[marks[18]:]
        self.emit(out)
        self.stamp()

    def qpath(self, isA, sfx):
        A = self.A
        acc, T = self.vAcc, self.vT
        KV = self.vKV
        if isA:
            kvl = ("buffer_load_dwordx4 %s, %s, %s, %s offen sc1\n" % (v(KV, 4), v(self.vK), s(self.sWS, 4), s(self.s_red)) +
                   "buffer_load_dwordx4 %s, %s, %s, %s offen sc1\n" % (v(KV + 4, 4), v(self.vK + 1), s(self.sWS, 4), s(self.s_red)) +
                   "buffer_load_dwordx2 %s, %s, %s, %s offen sc1\n" % (v(KV + 8, 2), v(self.vK + 2), s(self.sWS, 4), s(self.s_red)))
            kvr = range(KV, KV + 10)
        else:
            kvl = ("buffer_load_dwordx4 %s, %s, %s, %s offen sc1\n" % (v(KV, 4), v(self.vK), s(self.sWS, 4), s(self.s_red)) +
                   "buffer_load_dwordx2 %s, %s, %s, %s offen sc1\n" % (v(KV + 4, 2), v(self.vK + 2), s(self.sWS, 4), s(self.s_red)))
            kvr = range(KV, KV + 6)
        A(kvl, "kv")
        if not isA:
            self.emit(self.elu(acc, 40))
        self.emit(self.exch_write(acc, KBUF))
        A.wait_lg()
        A("s_barrier")
        self.stamp()
        side = self.dma_wo(3) + self.dma_wo(4)
        QF = T
        LF = T + 24
        P = [acc, acc + 16]
        E = [acc + 32, acc + 42]
        O = [acc + 52, acc + 62]
        G = [self.vF, self.vF + 4]
        X = T + 32

        def chk():
            self.checked("L_kv" + sfx, kvl, self.max_check(kvr, X))

        def num(D, src):
            if isA:
                return ["v_mfma_f32_32x32x16_bf16 %s, %s, %s, 0" % (v(D, 16), v(KV, 4), v(src, 4)),
                        "v_mfma_f32_32x32x16_bf16 %s, %s, %s, %s" % (v(D, 16), v(KV + 4, 4), v(src + 4, 4), v(D, 16)),
                        "v_mfma_f32_32x32x8_bf16 %s, %s, %s, %s" % (v(D, 16), v(KV + 8, 2), v(src + 8, 2), v(D, 16))]
            return ["v_mfma_f32_32x32x16_bf16 %s, %s, %s, 0" % (v(D, 16), v(KV, 4), v(src, 4)),
                    "v_mfma_f32_32x32x8_bf16 %s, %s, %s, %s" % (v(D, 16), v(KV + 4, 2), v(src + 4, 2), v(D, 16))]

        def fin(D, g, u):
            lf = LF + 4 * (u & 1) + 2 * (u >> 1)
            o = ["v_add_f32 %s, 0x%x, %s" % (v(D + 12), EPS, v(D + 12)),
                 "v_rcp_f32 %s, %s" % (v(D + 12), v(D + 12))]
            for k in range(0, 12, 2):
                o.append("v_pk_mul_f32 %s, %s, %s op_sel_hi:[1,0]" % (v(D + k, 2), v(D + k, 2), v(D + 12, 2)))
            for k in range(4):
                o.append("v_cvt_pk_bf16_f32 %s, %s, %s" % (v(g + k), v(D + 2 * k), v(D + 2 * k + 1)))
            o.append(("buffer_store_dwordx4 %s, %s, %s, %s offen offset:%d sc1" % (v(g, 4), v(self.vL16), s(self.sWS, 4), s(self.s_ost), 1024 * u), "ost"))
            for k in range(2):
                o.append("v_cvt_pk_bf16_f32 %s, %s, %s" % (v(lf + k), v(D + 8 + 2 * k), v(D + 9 + 2 * k)))
            return o

        main = []
        for u in range(4):
            main += self.head_reads(QF + 6 * u, u)
        for h in range(2):
            if isA:
                main += self.feat_mfma(P[0], QF + 12 * h) + self.feat_mfma(P[1], QF + 12 * h + 6)
                main += rr(self.softmax(P[0], E[0], O[0]), self.softmax(P[1], E[1], O[1]))
                src = O
            else:
                src = [QF + 12 * h, QF + 12 * h + 6]
            if h == 0:
                main.append(chk)
            main += num(P[0], src[0]) + num(P[1], src[1])
            main += rr(fin(P[0], G[0], 2 * h), fin(P[1], G[1], 2 * h + 1))
        self.emit(merge(main, side, 12, 150 if isA else len(main) - 10))
        for k in range(4):
            A("v_permlane32_swap_b32 %s, %s" % (v(LF + k), v(LF + 4 + k)))
        A("s_add_u32 %s, %s, 4096" % (s(self.s_t1), s(self.s_ost)))
        A("buffer_store_dwordx4 %s, %s, %s, %s offen sc1" % (v(LF, 4), v(self.vL16), s(self.sWS, 4), s(self.s_t1)), "ost")
        self.stamp()

    def outproj(self, sfx):
        A = self.A
        RD = self.opt["RD"]
        acc, T = self.vAcc, self.vT
        LX = acc + 40
        X = T
        A.wait_vm0()
        A("s_barrier")
        self.stamp()
        A("s_mov_b32 %s, 0" % s(self.s_slot))
        A.label("L_redo" + sfx)

        def gloads(gi):
            t = ""
            if gi < 4:
                for i in range(4 * gi, 4 * gi + 4):
                    t += "s_add_u32 %s, %s, %d\n" % (s(self.s_t0), s(self.s_rot), i)
                    t += "s_and_b32 %s, %s, 15\n" % (s(self.s_t0), s(self.s_t0))
                    t += "s_mul_i32 %s, %s, 10240\n" % (s(self.s_t0), s(self.s_t0))
                    t += "s_add_u32 %s, %s, %s\n" % (s(self.s_t0), s(self.s_t0), s(self.s_old))
                    for rt in range(2):
                        t += "buffer_load_dwordx4 %s, %s, %s, %s offen offset:%d sc1\n" % (a(8 * i + 4 * rt, 4), v(self.vOm), s(self.sWS, 4), s(self.s_t0), 2048 * rt)
            else:
                t += "s_lshr_b32 %s, %s, 2\n" % (s(self.s_t1), s(self.s_rot))
                for i in range(4):
                    t += "s_add_u32 %s, %s, %d\n" % (s(self.s_t0), s(self.s_t1), i)
                    t += "s_and_b32 %s, %s, 3\n" % (s(self.s_t0), s(self.s_t0))
                    t += "s_mul_i32 %s, %s, 40960\n" % (s(self.s_t0), s(self.s_t0))
                    t += "s_add_u32 %s, %s, %s\n" % (s(self.s_t0), s(self.s_t0), s(self.s_old))
                    for x in range(2):
                        t += "buffer_load_dwordx4 %s, %s, %s, %s offen sc1\n" % (v(LX + 8 * i + 4 * x, 4), v(self.vOx + x), s(self.sWS, 4), s(self.s_t0))
            return t

        def gcheck(gi):
            if gi < 4:
                t = ""
                for k in range(8):
                    t += "v_accvgpr_read_b32 %s, %s\n" % (v(X + k), a(32 * gi + 4 * k))
                return t + self.max_check(range(X, X + 8), X + 8)
            return self.max_check(range(LX, LX + 32, 4), X + 8)

        def off(f):
            k, j = f // 5, f % 5
            return WO_R[k // 4] + 5120 * (k % 4) + 32 * j

        def mfmas(f):
            k, j = f // 5, f % 5
            o = []
            for rt in range(2):
                d = acc + 8 * j + 4 * rt
                b = a(8 * k + 4 * rt, 4) if k < 16 else v(LX + 8 * (k - 16) + 4 * rt, 4)
                o.append("v_mfma_f32_16x16x32_bf16 %s, %s, %s, %s" % (v(d, 4), v(self.vF + 4 * (f % 8), 4), b, v(d, 4) if f >= 5 else "0"))
            return o

        def mk(gi):
            def fn():
                self.checked("L_o%d%s" % (gi, sfx), gloads(gi), gcheck(gi), bound=2000)
                if gi == 4:
                    for i in range(4):
                        A("v_swap_b32 %s, %s" % (v(LX + 8 * i + 2), v(LX + 8 * i + 4)))
                        A("v_swap_b32 %s, %s" % (v(LX + 8 * i + 3), v(LX + 8 * i + 5)))
            return fn

        A(gloads(0))
        A(gloads(1))
        for gi in range(5):
            main = []
            for f in range(20 * gi - (RD if gi == 0 else 0), 20 * gi + 20):
                if f == 20 * gi:
                    main.append(mk(gi))
                if f + RD < 100:
                    main += self.frag_reads(f + RD, off(f + RD))
                if f >= 0:
                    main += mfmas(f)
            side = gloads(gi + 2).strip().split("\n") if gi + 2 < 5 else []
            st = 2 * RD + 1 if gi == 0 else 1
            self.emit(merge(main, side, st))
        self.stamp()
        A("v_cmp_u_f32 vcc, %s, %s" % (v(acc), v(acc + 4)))
        A("s_cbranch_vccnz L_nan" + sfx)
        A.label("L_nanok" + sfx)
        self.slow.append("L_nan%s:\n    s_add_u32 %s, %s, 1\n    s_cmp_lt_u32 %s, 4\n    s_nop 7\n    s_nop 7\n    s_cbranch_scc1 L_redo%s\n    s_branch L_nanok%s\n"
                         % (sfx, s(self.s_slot), s(self.s_slot), s(self.s_slot), sfx, sfx))
        G = self.vF
        A("s_add_u32 %s, %s, 163840" % (s(self.s_t1), s(self.s_outb)))
        jobs = [((0, 0), (1, 0), self.vSo, self.s_outb, 0), ((0, 1), (1, 1), self.vSo, self.s_t1, 0),
                ((2, 0), (3, 0), self.vSo, self.s_outb, 64), ((2, 1), (3, 1), self.vSo, self.s_t1, 64),
                ((4, 0), (4, 1), self.vSo4, self.s_outb, 0)]
        for i, (p, q, ad, so, imm) in enumerate(jobs):
            g = G + 4 * i
            for x, (j, rt) in enumerate((p, q)):
                d = acc + 8 * j + 4 * rt
                A("v_cvt_pk_bf16_f32 %s, %s, %s" % (v(g + 2 * x), v(d), v(d + 1)))
                A("v_cvt_pk_bf16_f32 %s, %s, %s" % (v(g + 2 * x + 1), v(d + 2), v(d + 3)))
        for i, (p, q, ad, so, imm) in enumerate(jobs):
            g = G + 4 * i
            A("v_permlane16_swap_b32 %s, %s" % (v(g), v(g + 2)))
            A("v_permlane16_swap_b32 %s, %s" % (v(g + 1), v(g + 3)))
            A("buffer_store_dwordx4 %s, %s, %s, %s offen offset:%d %s" % (v(g, 4), v(ad), s(self.sOUT, 4), s(so), imm, self.opt["outflag"]))
        self.stamp()
        if self.opt["padto"]:
            A.wait_vm0()
            self.stamp()
            A("s_waitcnt lgkmcnt(0)")
            A("s_add_u32 s100, s100, %d" % self.opt["padto"])
            if self.opt["echo"]:
                A("s_sub_u32 s96, s98, s96")
                A("s_add_u32 s100, s100, s96")
            A("s_mov_b32 s94, 0")
            A.label("L_pad" + sfx)
            A("s_memrealtime s[4:5]")
            A("s_add_u32 s94, s94, 1")
            A("s_waitcnt lgkmcnt(0)")
            A("s_cmp_gt_u32 s94, 100000")
            A("s_cbranch_scc1 L_padx" + sfx)
            A("s_sub_u32 s4, s4, s100")
            A("s_cmp_lt_i32 s4, 0")
            A("s_cbranch_scc1 L_pad" + sfx)
            A.label("L_padx" + sfx)
        if self.stamps:
            A.wait_vm0()
            self.stamp()
            self.dump_stamps()
        A("s_endpgm")

    def dump_stamps(self):
        A = self.A
        T = self.vT
        pool = list(range(self.s_st, 100, 2)) + list(range(4, 24, 2))
        A("s_memrealtime %s" % s(self.s_ord, 2))
        A("s_waitcnt lgkmcnt(0)")
        A("s_lshl_b32 %s, s2, 2" % s(self.s_t0))
        A("s_add_u32 %s, %s, %s" % (s(self.s_t0), s(self.s_t0), s(self.s_w)))
        A("s_lshl_b32 %s, %s, 7" % (s(self.s_t0), s(self.s_t0)))
        A("s_add_u32 %s, %s, 0x%x" % (s(self.s_t0), s(self.s_t0), STATS))
        A("s_mov_b64 exec, 1")
        for i in range(self.nst):
            A("s_sub_u32 %s, %s, %s" % (s(self.s_t1), s(pool[i]), s(pool[0])))
            A("v_mov_b32 %s, %s" % (v(T), s(self.s_t1)))
            A("buffer_store_dword %s, off, %s, %s offset:%d" % (v(T), s(self.sWS, 4), s(self.s_t0), 4 * i))
        A("v_mov_b32 %s, s100" % v(T))
        A("buffer_store_dword %s, off, %s, %s offset:120" % (v(T), s(self.sWS, 4), s(self.s_t0)))
        A("v_mov_b32 %s, %s" % (v(T), s(self.s_ord)))
        A("buffer_store_dword %s, off, %s, %s offset:124" % (v(T), s(self.sWS, 4), s(self.s_t0)))

    def build(self):
        A = self.A
        self.prologue()
        self.setup()
        self.pass1()
        A("s_cmp_eq_u32 %s, 0" % s(self.s_br))
        A("s_cbranch_scc0 L_B")
        snap = A.snapshot()
        n0 = self.nst
        for isA, sfx in ((True, "A"), (False, "B")):
            if not isA:
                A.label("L_B")
                A.restore(snap)
                self.nst = n0
            self.kpath(isA)
            self.qpass(sfx)
            self.qpath(isA, sfx)
            self.outproj(sfx)
        body = A.text() + "".join(self.slow)
        head = open("cdna_kernels/%s.s.ref" % NAME).read().split("; Override launch")[0]
        txt = head
        txt += "; Generated by gen/gen.py (hand-written generator): one persistent launch, 256 workgroups, one per CU.\n"
        txt += "; @launch grid=(256,1,1) block=(256,1,1) lds=%d\n" % LDS_BYTES
        txt += '.amdgcn_target "amdgcn-amd-amdhsa--gfx950"\n.text\n.globl %s\n.p2align 8\n.type %s,@function\n%s:\n' % (KNAME, KNAME, KNAME)
        txt += body
        txt += "L_end:\n    s_endpgm\nL_codeend:\n.set CODE_BYTES, L_codeend - %s - 64\n" % KNAME
        txt += """.section .rodata,"a"
.p2align 6
.amdhsa_kernel %s
  .amdhsa_next_free_vgpr 416
  .amdhsa_next_free_sgpr 102
  .amdhsa_accum_offset 256
  .amdhsa_group_segment_fixed_size 0
  .amdhsa_kernarg_size 80
  .amdhsa_user_sgpr_count 2
  .amdhsa_user_sgpr_kernarg_segment_ptr 1
  .amdhsa_system_sgpr_workgroup_id_x 1
.end_amdhsa_kernel
""" % KNAME
        return txt


if __name__ == "__main__":
    out = sys.argv[1] if len(sys.argv) > 1 else "cdna_kernels/%s.s" % NAME
    import json
    opt = {}
    for x in sys.argv[2:]:
        if "=" in x:
            k, val = x.split("=", 1)
            opt[k] = json.loads(val)
    g = Gen(stamps=("stamps" in sys.argv), opt=opt)
    txt = g.build()
    open(out, "w").write(txt)
    print("wrote", out, len(txt), "bytes; nops", g.A.nops, "vT", g.vT, "s_st", g.s_st, "stamps", g.nst)
```
